```python
import torch

def _softmax(x, axis=-1):
    return torch.softmax(x, dim=axis)
def _gelu(x):
    return torch.nn.functional.gelu(x, approximate="tanh")
def _silu(x):
    return torch.nn.functional.silu(x)
def _sigmoid(x):
    return torch.sigmoid(x)
def _layernorm(x, axis=-1, eps=1e-5):
    m = x.mean(dim=axis, keepdim=True)
    v = x.var(dim=axis, keepdim=True, unbiased=False)
    return (x - m) / torch.sqrt(v + eps)
def _scatter_add(tgt, idx, src, axis=0):
    return tgt.clone().index_add_(axis, idx, src)
def _segment_sum(src, seg, n):
    out = torch.zeros((n,) + src.shape[1:], dtype=src.dtype)
    return out.index_add_(0, seg, src)
def _pad(x, pw):
    flat = tuple(v for pair in reversed(pw) for v in pair)
    return torch.nn.functional.pad(x, flat)

kernel_name = 'parallel_sum__ssm_conv_s4__dense_activation_mish__prompt'

def setup_inputs():

    _w = (lambda a: (lambda t: t.to(torch.bfloat16) if t.is_floating_point() else t)(torch.as_tensor(a)))
    def _A_setup():
        B, L, D, N = 1, 2048, 512, 128
        A_re = -(lambda _x: torch.exp(torch.as_tensor(_x)))((lambda *s: torch.randn(*s, dtype=torch.bfloat16) * 6.4)(D, N))
        A_im = torch.pi * (lambda *s: torch.randn(*s, dtype=torch.bfloat16) * 0.05)(D, N)
        B_re = (lambda *s: torch.randn(*s, dtype=torch.bfloat16) * 0.1)(D, N)
        B_im = (lambda *s: torch.randn(*s, dtype=torch.bfloat16) * 0.1)(D, N)
        C_re = (lambda *s: torch.randn(*s, dtype=torch.bfloat16) * 0.1)(D, N)
        C_im = (lambda *s: torch.randn(*s, dtype=torch.bfloat16) * 0.1)(D, N)
        log_dt = (lambda *s: torch.randn(*s, dtype=torch.bfloat16) * 0.05)(D) * 0.5 - 4.0
        Dskip = (lambda *s: torch.randn(*s, dtype=torch.bfloat16) * 0.05)(D)
        return {
            "u": _w((lambda *s: torch.randn(*s, dtype=torch.bfloat16) * 0.05)(B, L, D)),
            "A_re": _w(A_re),
            "A_im": _w(A_im),
            "B_re": _w(B_re),
            "B_im": _w(B_im),
            "C_re": _w(C_re),
            "C_im": _w(C_im),
            "log_dt": _w(log_dt),
            "Dskip": _w(Dskip),
        }
    _A_in = _A_setup()

    def _B_setup():
        B, S, D, F = 1, 2048, 512, 1792
        return {
            "x": _w((lambda *s: torch.randn(*s, dtype=torch.bfloat16) * 0.05)(B, S, D)),
            "w1": _w((lambda *s: torch.randn(*s, dtype=torch.bfloat16) * 0.8)(D, F) * (D ** -0.5)),
            "b1": _w((lambda *s: torch.randn(*s, dtype=torch.bfloat16) * 0.2)(F)),
            "w2": _w((lambda *s: torch.randn(*s, dtype=torch.bfloat16) * 0.2)(F, D) * (F ** -0.5)),
        }
    _B_in = _B_setup()

    return {
        "A_u": _A_in["u"],
        "A_A_re": _A_in["A_re"],
        "A_A_im": _A_in["A_im"],
        "A_B_re": _A_in["B_re"],
        "A_B_im": _A_in["B_im"],
        "A_C_re": _A_in["C_re"],
        "A_C_im": _A_in["C_im"],
        "A_log_dt": _A_in["log_dt"],
        "A_Dskip": _A_in["Dskip"],
        "B_x": _B_in["x"],
        "B_w1": _B_in["w1"],
        "B_b1": _B_in["b1"],
        "B_w2": _B_in["w2"],
    }

def reference(A_u, A_A_re, A_A_im, A_B_re, A_B_im, A_C_re, A_C_im, A_log_dt, A_Dskip, B_x, B_w1, B_b1, B_w2):
    def _A_ref(u, A_re, A_im, B_re, B_im, C_re, C_im, log_dt, Dskip):
        Bsz, L, D = u.shape
        dt = torch.exp(log_dt)[:, None]
        A = A_re + 1j * A_im
        Bc = B_re + 1j * B_im
        Cc = C_re + 1j * C_im
        logdA = dt * A
        dB = dt * Bc
        l = (lambda x, dt: x.to(dt))(torch.arange(L), A_re.dtype)
        P = torch.exp(logdA[:, :, None] * l[None, None, :])
        K = torch.einsum("dn,dnl,dn->dl", Cc, P, dB).real
        L2 = 2 * L
        Kp = _pad(K, ((0, 0), (0, L)))
        up = (lambda x, *d: x.permute(*d))(u, 0, 2, 1)
        up = _pad(up, ((0, 0), (0, 0), (0, L)))
        Kf = (lambda x, axes=(-2,-1): torch.fft.rfft2(x.float(), dim=axes))(Kp[:, None, :], axes=(-2, -1))
        Uf = (lambda x, axes=(-2,-1): torch.fft.rfft2(x.float(), dim=axes))(up[:, :, None, :], axes=(-2, -1))
        Yf = Uf * Kf[None, :, :, :]
        y = (lambda x, s, axes=(-2,-1): torch.fft.irfft2(x, s=s, dim=axes).to(torch.bfloat16))(Yf, (1, L2), axes=(-2, -1))[:, :, 0, :L]
        y = (lambda x, *d: x.permute(*d))(y, 0, 2, 1) + u * Dskip[None, None, :]
        return y

    def _B_ref(x, w1, b1, w2):
        h = torch.einsum("bsd,df->bsf", x, w1) + b1
        sp = torch.log1p(torch.exp(-torch.abs(h))) + torch.where(h > 0, h, torch.zeros_like(h))
        act = h * torch.tanh(sp)
        return torch.einsum("bsf,fd->bsd", act, w2)

    x = A_u
    xn = _layernorm(x, axis=-1)
    return x + _A_ref(xn, A_A_re, A_A_im, A_B_re, A_B_im, A_C_re, A_C_im, A_log_dt, A_Dskip) + _B_ref(xn, B_w1, B_b1, B_w2)
```

```python
import re

TRANS = ("v_exp_f32", "v_log_f32", "v_rcp_f32", "v_rsq_f32", "v_sqrt_f32", "v_sin_f32", "v_cos_f32")

def regs_of(tok):
    tok = tok.strip()
    tok = tok.replace("abs(", "").replace(")", "").replace("|", "")
    if tok.startswith("-"):
        tok = tok[1:]
    m = re.fullmatch(r"([vsa])\[(\d+):(\d+)\]", tok)
    if m:
        return {(m.group(1), i) for i in range(int(m.group(2)), int(m.group(3)) + 1)}
    m = re.fullmatch(r"([vsa])(\d+)", tok)
    if m:
        return {(m.group(1), int(m.group(2)))}
    if tok in ("vcc", "vcc_lo", "vcc_hi"):
        return {("vcc", 0)}
    if tok in ("exec", "exec_lo", "exec_hi"):
        return {("exec", 0)}
    if tok == "m0":
        return {("m0", 0)}
    return set()

class Ins:
    def __init__(self, text):
        self.text = text
        t = text.split(";")[0].strip()
        self.label = t.endswith(":")
        self.directive = t.startswith(".")
        self.mn = ""
        self.dst = set(); self.src = set()
        self.kind = "other"
        if not t or self.label or self.directive:
            self.kind = "none"
            return
        parts = t.split(None, 1)
        self.mn = parts[0]
        ops = []
        if len(parts) > 1:
            ops = [o.strip() for o in re.split(r",(?![^\[]*\])", parts[1])]
        clean = []
        for o in ops:
            clean.append(o.split()[0] if o else o)
        self.mods = t
        mn = self.mn
        ops = clean
        if mn.startswith("v_mfma"):
            self.kind = "mfma"
            self.dst = regs_of(ops[0])
            self.srcA = regs_of(ops[1]); self.srcB = regs_of(ops[2]); self.srcC = regs_of(ops[3])
            self.src = self.srcA | self.srcB | self.srcC
            self.passes = 8 if "32x32x16" in mn else 4
            if "32x32x2_f32" in mn: self.passes = 16
            if "16x16x4_f32" in mn: self.passes = 8
        elif mn.startswith("v_cmp"):
            self.kind = "valu"
            self.dst = regs_of(ops[0])
            for o in ops[1:]: self.src |= regs_of(o)
        elif mn.startswith("v_permlane") and "swap" in mn:
            self.kind = "permlane"
            self.dst = regs_of(ops[0]) | regs_of(ops[1])
            self.src = set(self.dst)
        elif mn.startswith("v_readfirstlane") or mn.startswith("v_readlane"):
            self.kind = "readlane"
            self.dst = regs_of(ops[0])
            for o in ops[1:]: self.src |= regs_of(o)
        elif mn.startswith("v_"):
            self.kind = "trans" if mn.split("_e")[0] in TRANS or mn in TRANS else "valu"
            self.dst = regs_of(ops[0])
            rest = ops[1:]
            if mn.startswith(("v_add_co", "v_addc_co", "v_sub_co", "v_subb_co")):
                self.dst |= regs_of(ops[1]); rest = ops[2:]
            for o in rest: self.src |= regs_of(o)
            if mn.startswith(("v_fmac", "v_pk_fmac")):
                self.src |= self.dst
            if "dpp" in mn or "row_" in t or "quad_perm" in t:
                self.kind = "dpp"
        elif mn.startswith("ds_"):
            self.kind = "ds"
            if mn.startswith(("ds_read", "ds_bpermute", "ds_permute", "ds_swizzle")):
                self.dst = regs_of(ops[0])
                for o in ops[1:]: self.src |= regs_of(o)
            else:
                for o in ops: self.src |= regs_of(o)
        elif mn.startswith(("buffer_", "global_")):
            self.kind = "vmem"
            is_lds = " lds" in t
            if "load" in mn and not is_lds:
                self.dst = regs_of(ops[0])
                for o in ops[1:]: self.src |= regs_of(o)
            else:
                for o in ops: self.src |= regs_of(o)
            if is_lds: self.src |= {("m0", 0)}
            self.widestore = ("store" in mn) and ("x4" in mn or "x3" in mn)
            if self.widestore:
                if mn.startswith("buffer_"): self.data = regs_of(ops[0])
                else: self.data = regs_of(ops[1])
        elif mn.startswith("s_"):
            self.kind = "salu"
            if mn in ("s_nop", "s_waitcnt", "s_barrier", "s_endpgm", "s_branch", "s_setprio", "s_sleep") or mn.startswith(("s_cbranch", "s_cmp")):
                for o in ops: self.src |= regs_of(o)
            else:
                self.dst = regs_of(ops[0]) if ops else set()
                for o in ops[1:]: self.src |= regs_of(o)
                if "saveexec" in mn: self.dst |= {("exec", 0)}
        self.states = 1
        if mn == "s_nop":
            self.states = int(ops[0], 0) + 1

def is_valu(i): return i.kind in ("valu", "trans", "dpp", "permlane", "readlane")

def required(p, c):
    req = 0
    pv = {r for r in p.dst if r[0] in ("v", "a")}
    ps = {r for r in p.dst if r[0] in ("s", "vcc")}
    if p.kind == "trans" and (pv & c.src) and c.kind != "trans":
        req = max(req, 1)
    if is_valu(p):
        if c.kind == "mfma" and (pv & c.src): req = max(req, 2)
        if c.kind in ("permlane", "dpp") and (pv & c.src): req = max(req, 2)
        if c.kind == "readlane" and (pv & c.src): req = max(req, 1)
        if ps:
            if is_valu(c) and (ps & c.src): req = max(req, 2)
            if c.kind == "readlane" and (ps & c.src): req = max(req, 4)
            if c.kind == "vmem" and (ps & c.src): req = max(req, 5)
            if c.kind == "salu" and (ps & c.src): req = max(req, 1)
        if ("exec", 0) in p.dst: req = max(req, 5)
    if p.kind == "mfma":
        P = p.passes
        full = {4: 8, 8: 12, 16: 20}[P]
        part = {4: 6, 8: 10, 16: 18}[P]
        war = {4: 3, 8: 7, 16: 15}[P]
        if c.kind == "mfma":
            if (pv & (c.srcA | c.srcB)): req = max(req, full)
            if (pv & c.srcC):
                if c.srcC == pv and c.passes == P: req = max(req, 0)
                else: req = max(req, part)
            if (pv & c.dst) and not (c.srcC == pv and c.passes == P): req = max(req, part)
        else:
            if (pv & (c.src | c.dst)): req = max(req, full)
            if is_valu(c) and (p.srcC & c.dst): req = max(req, war)
    if p.kind == "salu" and ("m0", 0) in p.dst and ("m0", 0) in c.src:
        req = max(req, 1)
    if p.kind == "vmem" and getattr(p, "widestore", False):
        if (p.data & c.dst): req = max(req, 2)
    return req

class Asm:
    def __init__(self):
        self.lines = []
    def __call__(self, s):
        for l in s.strip("\n").split("\n"):
            if l.strip():
                self.lines.append(l.strip())
    def finish(self, window=24):
        out = []
        for l in self.lines:
            c = Ins(l)
            if c.kind != "none":
                dist = 0
                need = 0
                for p in reversed(out):
                    if p.kind == "none":
                        continue
                    r = required(p, c)
                    if r > dist:
                        need = max(need, r - dist)
                    dist += p.states
                    if dist > window: break
                while need > 0:
                    n = min(need, 16)
                    out.append(Ins(f"s_nop {n-1}"))
                    need -= n
            out.append(c)
        txt = []
        for i in out:
            if i.label or i.directive: txt.append(i.text)
            else: txt.append("    " + i.text)
        return "\n".join(txt) + "\n"
```

```python
from asmlib import Asm

XNA = 0
XNT = 2 << 20
KREV = 4 << 20
KROW = 4224
HBUF = 8 << 20
AOT = 16 << 20

LOG2E = "0x3fb8aa3b"
INV2PI = "0x3e22f983"

def reduce_q(a, v, t):
    a(f"v_add_f32_dpp v{v}, v{v}, v{v} row_ror:8 row_mask:0xf bank_mask:0xf")
    a(f"v_mov_b32 v{t}, v{v}")
    a(f"v_permlane16_swap_b32 v{v}, v{t}")
    a(f"v_add_f32 v{v}, v{v}, v{t}")
    a(f"v_mov_b32 v{t}, v{v}")
    a(f"v_permlane32_swap_b32 v{v}, v{t}")
    a(f"v_add_f32 v{v}, v{v}, v{t}")

def bf16r(a, dst, src):
    a(f"v_cvt_pk_bf16_f32 v{dst}, v{src}, v{src}")
    a(f"v_lshlrev_b32 v{dst}, 16, v{dst}")

def ln_role(a):
    RS = 1040
    a("s_load_dwordx2 s[6:7], s[0:1], 0")
    a("v_and_b32 v1, 63, v0")
    a("v_lshrrev_b32 v2, 6, v0")
    a("v_and_b32 v3, 7, v1")
    a("v_lshrrev_b32 v4, 3, v1")
    a("v_lshl_add_u32 v5, v2, 3, v3")
    a("s_lshl_b32 s3, s2, 5")
    a("v_add_u32 v6, s3, v5")
    a("v_lshlrev_b32 v7, 10, v6")
    a("v_lshl_add_u32 v7, v4, 4, v7")
    a("s_waitcnt lgkmcnt(0)")
    for i in range(8):
        a(f"global_load_dwordx4 v[{16+4*i}:{19+4*i}], v7, s[6:7] offset:{128*i}")
    F = 64
    for k in range(32):
        if k % 4 == 0:
            a(f"s_waitcnt vmcnt({7 - k//4})")
        a(f"v_lshlrev_b32 v{F+2*k}, 16, v{16+k}")
        a(f"v_and_b32 v{F+2*k+1}, 0xffff0000, v{16+k}")
    for j in range(4):
        a(f"v_add_f32 v{8+j}, v{F+j}, v{F+4+j}")
    for k in range(8, 64, 4):
        for j in range(4):
            a(f"v_add_f32 v{8+j}, v{8+j}, v{F+k+j}")
    a("v_add_f32 v8, v8, v9"); a("v_add_f32 v10, v10, v11"); a("v_add_f32 v8, v8, v10")
    reduce_q(a, 8, 9)
    a("v_mul_f32 v8, 0x3b000000, v8")
    for j in range(4):
        a(f"v_mov_b32 v{10+j}, 0")
    for k in range(64):
        a(f"v_sub_f32 v14, v{F+k}, v8") if k % 2 == 0 else a(f"v_sub_f32 v15, v{F+k}, v8")
        t = 14 + (k % 2)
        a(f"v_fmac_f32 v{10+(k%4)}, v{t}, v{t}")
    a("v_add_f32 v10, v10, v11"); a("v_add_f32 v12, v12, v13"); a("v_add_f32 v10, v10, v12")
    reduce_q(a, 10, 9)
    a("v_mul_f32 v10, 0x3b000000, v10")
    bf16r(a, 8, 8)
    bf16r(a, 10, 10)
    a("v_add_f32 v10, 0x3727c5ac, v10")
    bf16r(a, 10, 10)
    a("v_sqrt_f32 v10, v10")
    bf16r(a, 10, 10)
    a("v_rcp_f32 v10, v10")
    for k in range(32):
        f0, f1 = F + 2*k, F + 2*k + 1
        a(f"v_sub_f32 v{f0}, v{f0}, v8")
        a(f"v_sub_f32 v{f1}, v{f1}, v8")
        a(f"v_cvt_pk_bf16_f32 v{16+k}, v{f0}, v{f1}")
        a(f"v_lshlrev_b32 v{f0}, 16, v{16+k}")
        a(f"v_and_b32 v{f1}, 0xffff0000, v{16+k}")
        a(f"v_mul_f32 v{f0}, v{f0}, v10")
        a(f"v_mul_f32 v{f1}, v{f1}, v10")
        a(f"v_cvt_pk_bf16_f32 v{16+k}, v{f0}, v{f1}")
    a("v_lshrrev_b32 v11, 4, v6")
    a("v_lshlrev_b32 v11, 14, v11")
    a("v_and_b32 v12, 15, v6")
    a("v_lshl_add_u32 v11, v12, 4, v11")
    a("v_lshl_add_u32 v11, v4, 10, v11")
    a("v_add_u32 v12, 0x2000, v11")
    for i in range(8):
        base = 11 + (i & 1)
        a(f"global_store_dwordx4 v{base}, v[{16+4*i}:{19+4*i}], s[4:5] offset:{(i>>1)*256}")
    a(f"v_mul_u32_u24 v13, {RS}, v5")
    a("v_lshl_add_u32 v13, v4, 4, v13")
    for i in range(8):
        a(f"ds_write_b128 v13, v[{16+4*i}:{19+4*i}] offset:{128*i}")
    a("s_waitcnt lgkmcnt(0)")
    a("s_barrier")
    a("v_lshrrev_b32 v8, 4, v1")
    a("v_bfe_u32 v9, v1, 2, 2")
    a("v_and_b32 v10, 3, v1")
    a("v_lshl_add_u32 v9, v8, 3, v9")
    a(f"v_mul_u32_u24 v9, {RS}, v9")
    a("v_lshl_add_u32 v9, v10, 3, v9")
    a("v_lshl_add_u32 v9, v2, 5, v9")
    a("v_and_b32 v10, 15, v1")
    a("v_lshl_add_u32 v10, v2, 4, v10")
    a("v_lshlrev_b32 v10, 12, v10")
    a("v_lshl_add_u32 v10, v8, 4, v10")
    a("s_lshl_b32 s3, s2, 6")
    a(f"s_add_u32 s3, s3, {XNT}")
    a("v_add_u32 v10, s3, v10")
    for it in range(8):
        a(f"ds_read_b64_tr_b16 v[{16+4*it}:{17+4*it}], v9 offset:{128*it}")
        a(f"ds_read_b64_tr_b16 v[{18+4*it}:{19+4*it}], v9 offset:{128*it + 4*RS}")
    for it in range(8):
        a(f"s_waitcnt lgkmcnt({14-2*it})")
        a(f"global_store_dwordx4 v10, v[{16+4*it}:{19+4*it}], s[4:5]")
        if it < 7:
            a("v_add_u32 v10, 0x40000, v10")
    a("s_branch L_prep_done")

def cexp(a, vval, lr2, lir, re, im, t0):
    a(f"v_mul_f32 v{t0}, v{lr2}, v{vval}")
    a(f"v_mul_f32 v{im}, v{lir}, v{vval}")
    a(f"v_exp_f32 v{t0}, v{t0}")
    a(f"v_fract_f32 v{im}, v{im}")
    a(f"v_cos_f32 v{re}, v{im}")
    a(f"v_sin_f32 v{im}, v{im}")
    a(f"v_mul_f32 v{re}, v{re}, v{t0}")
    a(f"v_mul_f32 v{im}, v{im}, v{t0}")

def split(a, re, im, h, l, t0, t1):
    a(f"v_cvt_pk_bf16_f32 v{h}, v{re}, v{im}")
    a(f"v_lshlrev_b32 v{t0}, 16, v{h}")
    a(f"v_and_b32 v{t1}, 0xffff0000, v{h}")
    a(f"v_sub_f32 v{t0}, v{re}, v{t0}")
    a(f"v_sub_f32 v{t1}, v{im}, v{t1}")
    a(f"v_cvt_pk_bf16_f32 v{l}, v{t0}, v{t1}")

def kgen_role(a):
    a("L_kgen:")
    a("s_load_dwordx4 s[8:11], s[0:1], 8")
    a("s_load_dwordx4 s[12:15], s[0:1], 24")
    a("s_load_dwordx4 s[16:19], s[0:1], 40")
    a("s_load_dwordx2 s[20:21], s[0:1], 56")
    a("s_sub_u32 s3, s2, 64")
    a("v_and_b32 v1, 63, v0")
    a("v_lshrrev_b32 v2, 6, v0")
    a("v_and_b32 v3, 15, v1")
    a("v_lshrrev_b32 v4, 4, v1")
    a("s_lshl_b32 s22, s3, 8")
    a("v_lshlrev_b32 v10, 6, v2")
    a("v_lshl_add_u32 v10, v4, 3, v10")
    a("v_add_u32 v10, s22, v10")
    a("s_lshr_b32 s23, s3, 1")
    a("s_lshl_b32 s23, s23, 2")
    a("s_waitcnt lgkmcnt(0)")
    a("s_load_dword s24, s[20:21], s23")
    ptr = ["s[8:9]", "s[10:11]", "s[12:13]", "s[14:15]", "s[16:17]", "s[18:19]"]
    for arr in range(6):
        for ks in range(2):
            r = 16 + (arr*2 + ks)*2
            a(f"global_load_dwordx2 v[{r}:{r+1}], v10, {ptr[arr]} offset:{32*ks}")
    a("v_lshlrev_b32 v5, 3, v3")
    a("v_cvt_f32_u32 v5, v5")
    a("v_lshrrev_b32 v6, 3, v3")
    a("v_and_b32 v11, 7, v3")
    a("v_lshl_add_u32 v6, v6, 7, v11")
    a("v_cvt_f32_u32 v6, v6")
    a("v_lshrrev_b32 v7, 2, v3")
    a("v_lshlrev_b32 v7, 7, v7")
    a("v_and_b32 v11, 3, v3")
    a("v_lshl_add_u32 v7, v11, 1, v7")
    a("v_add_u32 v7, 0x100, v7")
    a("v_subrev_u32 v11, 8, v3")
    a("v_lshrrev_b32 v11, 1, v11")
    a("v_lshlrev_b32 v11, 7, v11")
    a("v_and_b32 v12, 1, v3")
    a("v_lshl_add_u32 v11, v12, 2, v11")
    a("v_add_u32 v11, 0x200, v11")
    a("v_cmp_gt_u32 vcc, 8, v3")
    a("v_cndmask_b32 v7, v11, v7, vcc")
    a("v_cvt_f32_u32 v7, v7")
    a("v_lshlrev_b32 v8, 7, v3")
    a("v_add_u32 v8, 0x400, v8")
    a("v_cmp_gt_u32 vcc, 9, v3")
    a("v_cndmask_b32 v8, 0, v8, vcc")
    a("v_cvt_f32_u32 v8, v8")
    a("s_waitcnt lgkmcnt(0)")
    a("s_and_b32 s25, s3, 1")
    a("s_lshl_b32 s25, s25, 4")
    a("s_lshr_b32 s24, s24, s25")
    a("s_lshl_b32 s24, s24, 16")
    a("v_mov_b32 v9, s24")
    a(f"v_mul_f32 v9, {LOG2E}, v9")
    a("v_exp_f32 v9, v9")
    bf16r(a, 9, 9)
    a("s_waitcnt vmcnt(0)")
    XH = lambda t, ks: 64 + (t*2 + ks)*8
    XL = lambda t, ks: 64 + (t*2 + ks)*8 + 4
    YH = lambda ks: 112 + ks*8
    YL = lambda ks: 112 + ks*8 + 4
    for ks in range(2):
        for q in range(4):
            for arr in range(6):
                r = 16 + (arr*2 + ks)*2 + (q >> 1)
                if q & 1: a(f"v_and_b32 v{40+arr}, 0xffff0000, v{r}")
                else: a(f"v_lshlrev_b32 v{40+arr}, 16, v{r}")
            a("v_mul_f32 v46, v9, v40")
            a(f"v_mul_f32 v46, {LOG2E}, v46")
            a("v_mul_f32 v47, v9, v41")
            a(f"v_mul_f32 v47, {INV2PI}, v47")
            a("v_mul_f32 v42, v9, v42")
            a("v_mul_f32 v43, v9, v43")
            a("v_mul_f32 v48, v44, v42")
            a("v_fma_f32 v48, -v45, v43, v48")
            a("v_mul_f32 v49, v44, v43")
            a("v_fma_f32 v49, v45, v42, v49")
            cexp(a, 5, 46, 47, 50, 51, 52)
            a("v_mul_f32 v53, v48, v50")
            a("v_fma_f32 v53, -v49, v51, v53")
            a("v_mul_f32 v54, v48, v51")
            a("v_fma_f32 v54, v49, v50, v54")
            a("v_sub_f32 v54, 0, v54")
            split(a, 53, 54, YH(ks)+q, YL(ks)+q, 55, 56)
            for t in range(3):
                cexp(a, 6+t, 46, 47, 50, 51, 52)
                split(a, 50, 51, XH(t, ks)+q, XL(t, ks)+q, 55, 56)
    for r in range(128, 140):
        a(f"v_mov_b32 v{r}, 0")
    for t in range(3):
        c = f"v[{128+4*t}:{131+4*t}]"
        for ks in range(2):
            xh = f"v[{XH(t,ks)}:{XH(t,ks)+3}]"; xl = f"v[{XL(t,ks)}:{XL(t,ks)+3}]"
            yh = f"v[{YH(ks)}:{YH(ks)+3}]"; yl = f"v[{YL(ks)}:{YL(ks)+3}]"
            a(f"v_mfma_f32_16x16x32_bf16 {c}, {xl}, {yh}, {c}")
            a(f"v_mfma_f32_16x16x32_bf16 {c}, {xh}, {yl}, {c}")
            a(f"v_mfma_f32_16x16x32_bf16 {c}, {xh}, {yh}, {c}")
    for j in range(8):
        g = 16 + j
        a(f"v_lshlrev_b32 v40, 3, v0")
        a(f"v_sub_u32 v40, {2047 - j}, v40")
        a("v_cvt_f32_u32 v40, v40")
        bf16r(a, 40, 40)
        a("v_cvt_u32_f32 v40, v40")
        a("v_lshrrev_b32 v41, 7, v40")
        a("v_and_b32 v42, 7, v40")
        a("v_bfe_u32 v43, v40, 3, 4")
        a("v_lshl_add_u32 v44, v41, 3, v42")
        a("v_lshrrev_b32 v45, 1, v42")
        a("v_lshl_add_u32 v45, v41, 2, v45")
        a("v_add_u32 v45, 8, v45")
        a("v_lshrrev_b32 v46, 2, v42")
        a("v_lshl_add_u32 v46, v41, 1, v46")
        a("v_add_u32 v46, 16, v46")
        a("v_add_u32 v47, 24, v41")
        a("v_cmp_gt_u32 vcc, 8, v41")
        a("v_cndmask_b32 v47, v47, v46, vcc")
        a("v_cmp_gt_u32 vcc, 4, v41")
        a("v_cndmask_b32 v47, v47, v45, vcc")
        a("v_cmp_gt_u32 vcc, 2, v41")
        a("v_cndmask_b32 v47, v47, v44, vcc")
        a("v_lshrrev_b32 v44, 2, v47")
        a("v_lshl_add_u32 v44, v44, 4, v43")
        a("v_lshlrev_b32 v44, 4, v44")
        a("v_and_b32 v45, 3, v47")
        a(f"v_lshl_add_u32 v{g}, v45, 2, v44")
    a("v_mul_u32_u24 v40, 3072, v2")
    a("v_lshl_add_u32 v40, v1, 4, v40")
    for t in range(3):
        a(f"ds_write_b128 v40, v[{128+4*t}:{131+4*t}] offset:{1024*t}")
    a("s_waitcnt lgkmcnt(0)")
    a("s_barrier")
    for j in range(8):
        for w in range(4):
            a(f"ds_read_b32 v{64+4*j+w}, v{16+j} offset:{3072*w}")
    for j in range(8):
        a(f"s_waitcnt lgkmcnt({min(15, 28-4*j)})")
        a(f"v_add_f32 v{64+4*j}, v{64+4*j}, v{65+4*j}")
        a(f"v_add_f32 v{66+4*j}, v{66+4*j}, v{67+4*j}")
        a(f"v_add_f32 v{64+4*j}, v{64+4*j}, v{66+4*j}")
    for k in range(4):
        a(f"v_cvt_pk_bf16_f32 v{40+k}, v{64+8*k}, v{68+8*k}")
    a(f"s_mul_i32 s22, s3, {KROW}")
    a(f"s_add_u32 s22, s22, {KREV}")
    a("v_lshlrev_b32 v44, 4, v0")
    a("v_add_u32 v44, s22, v44")
    a("global_store_dwordx4 v44, v[40:43], s[4:5]")
    a("v_mov_b32 v48, 0"); a("v_mov_b32 v49, 0"); a("v_mov_b32 v50, 0"); a("v_mov_b32 v51, 0")
    a("v_add_u32 v44, 0x1000, v44")
    a("v_cmp_gt_u32 vcc, 8, v0")
    a("s_and_saveexec_b64 s[26:27], vcc")
    a("s_cbranch_execz L_prep_done")
    a("global_store_dwordx4 v44, v[48:51], s[4:5]")

def gen_k1(a):
    a(".globl prep_kernel")
    a(".p2align 8")
    a(".type prep_kernel,@function")
    a("prep_kernel:")
    a("s_cmp_ge_u32 s2, 576")
    a("s_cbranch_scc1 L_prep_done")
    a("s_load_dwordx2 s[4:5], s[0:1], 120")
    a("s_cmp_ge_u32 s2, 64")
    a("s_cbranch_scc1 L_kgen")
    ln_role(a)
    kgen_role(a)
    a("L_prep_done:")
    a("s_endpgm")

def kd(name, vgpr, sgpr=64):
    return f""".p2align 6
.amdhsa_kernel {name}
  .amdhsa_next_free_vgpr {vgpr}
  .amdhsa_next_free_sgpr {sgpr}
  .amdhsa_accum_offset {(vgpr+3)//4*4}
  .amdhsa_group_segment_fixed_size 0
  .amdhsa_kernarg_size 128
  .amdhsa_user_sgpr_count 2
  .amdhsa_user_sgpr_kernarg_segment_ptr 1
  .amdhsa_system_sgpr_workgroup_id_x 1
.end_amdhsa_kernel
"""

if __name__ == "__main__":
    a = Asm()
    gen_k1(a)
    txt = "; @launch kernel=prep_kernel grid=(576,1,1) block=(256,1,1) lds=33280\n"
    txt += '.amdgcn_target "amdgcn-amd-amdhsa--gfx950"\n.text\n'
    txt += a.finish()
    txt += '.section .rodata,"a"\n' + kd("prep_kernel", 140)
    open("../t1.s", "w").write(txt)
```

```python
from asmlib import Asm
from k1 import XNA, XNT, KREV, KROW, HBUF, AOT, LOG2E, bf16r, kd

class Q:
    def __init__(self, a, name, maxc):
        self.a = a; self.name = name; self.maxc = maxc; self.q = []
    def issue(self, tag): self.q.append(tag)
    def wait(self, tag):
        if tag not in self.q: return
        idx = len(self.q) - 1 - self.q[::-1].index(tag)
        n = len(self.q) - 1 - idx
        n = min(n, self.maxc)
        self.a(f"s_waitcnt {self.name}({n})")
        self.q = self.q[len(self.q) - n:] if n > 0 else []
    def waitall(self):
        self.a(f"s_waitcnt {self.name}(0)")
        self.q = []

def mish_pair(a, x0, x1, b0, b1, out, t):
    a(f"v_cvt_pk_bf16_f32 v{t}, v{x0}, v{x1}")
    a(f"v_lshlrev_b32 v{x0}, 16, v{t}")
    a(f"v_and_b32 v{x1}, 0xffff0000, v{t}")
    a(f"v_add_f32 v{x0}, v{x0}, v{b0}")
    a(f"v_add_f32 v{x1}, v{x1}, v{b1}")
    a(f"v_cvt_pk_bf16_f32 v{t}, v{x0}, v{x1}")
    a(f"v_lshlrev_b32 v{x0}, 16, v{t}")
    a(f"v_and_b32 v{x1}, 0xffff0000, v{t}")
    a(f"v_mul_f32 v{t}, {LOG2E}, v{x0}")
    a(f"v_mul_f32 v{t+1}, {LOG2E}, v{x1}")
    a(f"v_min_f32 v{t}, 0x41f00000, v{t}")
    a(f"v_min_f32 v{t+1}, 0x41f00000, v{t+1}")
    a(f"v_exp_f32 v{t}, v{t}")
    a(f"v_exp_f32 v{t+1}, v{t+1}")
    a(f"v_add_f32 v{t+2}, 2.0, v{t}")
    a(f"v_add_f32 v{t+3}, 2.0, v{t+1}")
    a(f"v_mul_f32 v{t}, v{t}, v{t+2}")
    a(f"v_mul_f32 v{t+1}, v{t+1}, v{t+3}")
    a(f"v_add_f32 v{t+2}, 2.0, v{t}")
    a(f"v_add_f32 v{t+3}, 2.0, v{t+1}")
    a(f"v_rcp_f32 v{t+2}, v{t+2}")
    a(f"v_rcp_f32 v{t+3}, v{t+3}")
    a(f"v_mul_f32 v{x0}, v{x0}, v{t}")
    a(f"v_mul_f32 v{x1}, v{x1}, v{t+1}")
    a(f"v_mul_f32 v{x0}, v{x0}, v{t+2}")
    a(f"v_mul_f32 v{x1}, v{x1}, v{t+3}")
    a(f"v_cvt_pk_bf16_f32 v{out}, v{x0}, v{x1}")

def gen_gemm1(a):
    a(".globl gemm1_kernel")
    a(".p2align 8")
    a(".type gemm1_kernel,@function")
    a("gemm1_kernel:")
    a("s_cmp_ge_u32 s2, 256")
    a("s_cbranch_scc1 L_g1_done")
    a("s_load_dwordx2 s[4:5], s[0:1], 120")
    a("s_load_dwordx4 s[8:11], s[0:1], 80")
    a("s_and_b32 s12, s2, 3")
    a("s_lshl_b32 s12, s12, 2")
    a("s_bfe_u32 s13, s2, 0x20003")
    a("s_add_u32 s12, s12, s13")
    a("s_bfe_u32 s13, s2, 0x10002")
    a("s_lshl_b32 s13, s13, 3")
    a("s_lshr_b32 s14, s2, 5")
    a("s_add_u32 s13, s13, s14")
    a("v_and_b32 v1, 63, v0")
    a("v_lshrrev_b32 v2, 6, v0")
    a("v_readfirstlane_b32 s15, v2")
    a("v_lshrrev_b32 v3, 4, v1")
    a("v_and_b32 v4, 15, v1")
    a("s_lshl_b32 s16, s12, 3")
    a("s_add_u32 s16, s16, s15")
    a("s_lshl_b32 s17, s16, 14")
    a("v_lshlrev_b32 v5, 4, v1")
    a("v_add_u32 v5, s17, v5")
    a("s_min_u32 s18, s15, 6")
    a("s_lshl_b32 s19, s18, 6")
    a("v_add_u32 v6, s19, v1")
    a("v_mul_u32_u24 v7, 4682, v6")
    a("v_lshrrev_b32 v7, 16, v7")
    a("v_mul_u32_u24 v8, 14, v7")
    a("v_sub_u32 v8, v6, v8")
    a("v_mul_u32_u24 v7, 3584, v7")
    a("v_lshl_add_u32 v7, v8, 4, v7")
    a("s_mul_i32 s19, s13, 224")
    a("v_add_u32 v7, s19, v7")
    a("s_lshl_b32 s18, s18, 10")
    a("v_lshlrev_b32 v8, 3, v3")
    a("v_add_u32 v8, s19, v8")
    a("v_mul_u32_u24 v9, 28800, v3")
    a("v_bfe_u32 v10, v1, 2, 2")
    a("v_mul_u32_u24 v10, 224, v10")
    a("v_add_u32 v9, v9, v10")
    a("v_and_b32 v10, 3, v1")
    a("v_lshl_add_u32 v9, v10, 3, v9")
    a("s_waitcnt lgkmcnt(0)")
    a("s_mov_b32 s20, s8"); a("s_mov_b32 s21, s9"); a("s_mov_b32 s22, 1835008"); a("s_mov_b32 s23, 0x00020000")
    vm = Q(a, "vmcnt", 63); lg = Q(a, "lgkmcnt", 15)
    BI = 16
    XF = 32
    WF = 96
    AC = 152
    for t in range(7):
        a(f"global_load_dwordx2 v[{BI+2*t}:{BI+2*t+1}], v8, s[10:11] offset:{32*t}")
        vm.issue(("b", t))
    for p in range(4):
        for s in range(4*p, 4*p+4):
            if s % 4 == 0 and s > 0:
                a("v_add_u32 v5, 0x1000, v5")
            a(f"global_load_dwordx4 v[{XF+4*s}:{XF+4*s+3}], v5, s[4:5] offset:{1024*(s%4)}")
            vm.issue(("x", s))
        for g in range(4):
            a(f"s_add_u32 s24, s18, {g*28800 + p*7168}")
            a("s_mov_b32 m0, s24")
            a(f"s_mov_b32 s25, {(128*g + 32*p)*3584}")
            a("buffer_load_dwordx4 v7, s[20:23], s25 offen lds")
            vm.issue(("w", p))
    for r in range(28):
        a(f"v_mov_b32 v{AC+r}, 0")
    def reads(s, t):
        b = WF + 28*(s & 1) + 4*t
        a(f"ds_read_b64_tr_b16 v[{b}:{b+1}], v9 offset:{s*1792 + t*32}")
        lg.issue((s, t))
        a(f"ds_read_b64_tr_b16 v[{b+2}:{b+3}], v9 offset:{s*1792 + 896 + t*32}")
        lg.issue((s, t))
    vm.wait(("w", 0))
    a("s_barrier")
    for t in range(7): reads(0, t)
    for s in range(16):
        if s + 1 < 16 and (s + 1) % 4 == 0:
            vm.wait(("w", (s+1)//4))
            a("s_barrier")
        for t in range(7):
            if s + 1 < 16: reads(s+1, t)
            lg.wait((s, t))
            b = WF + 28*(s & 1) + 4*t
            a(f"v_mfma_f32_16x16x32_bf16 v[{AC+4*t}:{AC+4*t+3}], v[{b}:{b+3}], v[{XF+4*s}:{XF+4*s+3}], v[{AC+4*t}:{AC+4*t+3}]")
    a("s_mul_i32 s24, s16, 57344")
    a("s_mul_i32 s25, s13, 3584")
    a("s_add_u32 s24, s24, s25")
    a(f"s_add_u32 s24, s24, {HBUF}")
    a("v_lshrrev_b32 v10, 1, v3")
    a("v_lshlrev_b32 v10, 8, v10")
    a("v_lshl_add_u32 v10, v4, 4, v10")
    a("v_and_b32 v11, 1, v3")
    a("v_lshl_add_u32 v10, v11, 3, v10")
    a("v_add_u32 v10, s24, v10")
    for t in range(7):
        a(f"v_lshlrev_b32 v96, 16, v{BI+2*t}")
        a(f"v_and_b32 v97, 0xffff0000, v{BI+2*t}")
        a(f"v_lshlrev_b32 v98, 16, v{BI+2*t+1}")
        a(f"v_and_b32 v99, 0xffff0000, v{BI+2*t+1}")
        o = 108 + 2*(t & 1)
        mish_pair(a, AC+4*t, AC+4*t+1, 96, 97, o, 100)
        mish_pair(a, AC+4*t+2, AC+4*t+3, 98, 99, o+1, 104)
        a(f"global_store_dwordx2 v10, v[{o}:{o+1}], s[4:5] offset:{512*t}")
    a("L_g1_done:")
    a("s_endpgm")

if __name__ == "__main__":
    from k1 import gen_k1
    a = Asm()
    gen_k1(a)
    gen_gemm1(a)
    txt = "; @launch kernel=prep_kernel grid=(576,1,1) block=(256,1,1) lds=33280\n"
    txt += "; @launch kernel=gemm1_kernel grid=(256,1,1) block=(512,1,1) lds=115200\n"
    txt += '.amdgcn_target "amdgcn-amd-amdhsa--gfx950"\n.text\n'
    txt += a.finish()
    txt += '.section .rodata,"a"\n' + kd("prep_kernel", 140) + kd("gemm1_kernel", 180)
    open("../t2.s", "w").write(txt)
```

```python
from asmlib import Asm
from k1 import XNA, XNT, KREV, KROW, HBUF, AOT, LOG2E, bf16r, kd
from k2 import Q

CS = 4160
KB = 0
UB = 8*CS
UD = UB + 3072
RSC = UD + 5120
DSZ = RSC + 4096
CONV_LDS = 2*DSZ

def conv_epilogue(a, acc, t, vu, vst, sdsk):
    for qd in range(4):
        a(f"ds_read_b64 v[{40+2*qd}:{41+2*qd}], v{vu} offset:{32*t*80 + 16*qd}")
    for qd in range(4):
        a(f"s_waitcnt lgkmcnt({3-qd})")
        for h in range(2):
            u = 40 + 2*qd + h
            x0, x1 = acc + 4*qd + 2*h, acc + 4*qd + 2*h + 1
            a(f"v_lshlrev_b32 v48, 16, v{u}")
            a(f"v_and_b32 v49, 0xffff0000, v{u}")
            a(f"v_mul_f32 v48, {sdsk}, v48")
            a(f"v_mul_f32 v49, {sdsk}, v49")
            a(f"v_cvt_pk_bf16_f32 v50, v48, v49")
            a(f"v_lshlrev_b32 v48, 16, v50")
            a(f"v_and_b32 v49, 0xffff0000, v50")
            a(f"v_cvt_pk_bf16_f32 v50, v{x0}, v{x1}")
            a(f"v_lshlrev_b32 v{x0}, 16, v50")
            a(f"v_and_b32 v{x1}, 0xffff0000, v50")
            a(f"v_add_f32 v{x0}, v{x0}, v48")
            a(f"v_add_f32 v{x1}, v{x1}, v49")
            a(f"v_cvt_pk_bf16_f32 v{52+2*(qd&1)+h}, v{x0}, v{x1}")
        a(f"global_store_dwordx2 v{vst}, v[{52+2*(qd&1)}:{53+2*(qd&1)}], s[4:5] offset:{2048*t + 16*qd}")

def conv_loop(a, items, accs, vF, vU):
    lg = Q(a, "lgkmcnt", 15)
    D = 4
    BUF = 64
    def rd(i):
        t, e = items[i]
        b = BUF + 8*(i % D)
        ce = -((-e) // 2)
        a(f"ds_read_b128 v[{b}:{b+3}], v{vF} offset:{(252 - 2*e)*16}")
        lg.issue(i)
        a(f"ds_read_b128 v[{b+4}:{b+7}], v{vU} offset:{(31 + 32*t - ce)*80 + 32*(e & 1)}")
        lg.issue(i)
    for i in range(D - 1): rd(i)
    for i in range(len(items)):
        if i + D - 1 < len(items): rd(i + D - 1)
        lg.wait(i)
        t, e = items[i]
        b = BUF + 8*(i % D)
        c = accs[t]
        a(f"v_mfma_f32_32x32x16_bf16 v[{c}:{c+15}], v[{b}:{b+3}], v[{b+4}:{b+7}], v[{c}:{c+15}]")

def gen_conv(a):
    a(".globl conv_kernel")
    a(".p2align 8")
    a(".type conv_kernel,@function")
    a("conv_kernel:")
    a("s_cmp_ge_u32 s2, 256")
    a("s_cbranch_scc1 L_cv_done")
    a("s_load_dwordx2 s[4:5], s[0:1], 120")
    a("s_load_dwordx2 s[6:7], s[0:1], 64")
    a("v_and_b32 v1, 63, v0")
    a("v_lshrrev_b32 v2, 6, v0")
    a("v_readfirstlane_b32 s12, v2")
    a("s_lshr_b32 s13, s12, 1")
    a("s_and_b32 s14, s12, 1")
    a("s_lshl_b32 s15, s2, 1")
    a("s_add_u32 s15, s15, s13")
    a(f"s_mul_i32 s16, s13, {DSZ}")
    a("s_lshl_b32 s17, s2, 2")
    a("s_waitcnt lgkmcnt(0)")
    a("s_load_dword s18, s[6:7], s17")
    a("s_mov_b32 s8, s4"); a("s_mov_b32 s9, s5"); a("s_mov_b32 s10, 0x10000000"); a("s_mov_b32 s11, 0x00020000")
    a(f"s_mul_i32 s19, s15, {KROW}")
    a(f"s_add_u32 s19, s19, {KREV}")
    a("v_lshlrev_b32 v3, 4, v1")
    a("s_lshl_b32 s20, s14, 3")
    a("v_add_u32 v3, s20, v3")
    a(f"s_mul_i32 s21, s14, {4*CS}")
    a("s_add_u32 s21, s21, s16")
    for c in range(4):
        a(f"s_add_u32 s22, s21, {c*CS}")
        a("s_mov_b32 m0, s22")
        for i in range(4):
            a(f"buffer_load_dwordx4 v3, s[8:11], s19 offen offset:{1024*i} lds")
        a("s_add_u32 s22, s22, 4096")
        a("s_mov_b32 m0, s22")
        a("v_add_u32 v4, 0x1000, v3")
        a("s_mov_b64 exec, 0xf")
        a("buffer_load_dwordx4 v4, s[8:11], s19 offen lds")
        a("s_mov_b64 exec, -1")
        if c < 3: a("v_add_u32 v3, 2, v3")
    a("s_lshl_b32 s19, s15, 12")
    a(f"s_add_u32 s19, s19, {XNT}")
    a("s_mul_i32 s20, s14, 3")
    for k in range(3):
        a(f"s_add_u32 s22, s20, {k}")
        a("s_min_u32 s22, s22, 4")
        a("s_lshl_b32 s23, s22, 6")
        a("v_add_u32 v4, s23, v1")
        a("v_mul_u32_u24 v5, 13108, v4")
        a("v_lshrrev_b32 v5, 16, v5")
        a("v_mul_u32_u24 v6, 5, v5")
        a("v_sub_u32 v6, v4, v6")
        a("v_min_u32 v6, 3, v6")
        a("v_lshlrev_b32 v5, 6, v5")
        a("v_lshl_add_u32 v5, v6, 4, v5")
        a("s_lshl_b32 s23, s22, 10")
        a("s_add_u32 s23, s23, s16")
        a(f"s_add_u32 s23, s23, {UD}")
        a("s_mov_b32 m0, s23")
        a("buffer_load_dwordx4 v5, s[8:11], s19 offen lds")
    for r in range(8, 12): a(f"v_mov_b32 v{r}, 0")
    a("v_lshlrev_b32 v4, 4, v1")
    a("v_add_u32 v4, s16, v4")
    for i in range(3):
        a(f"ds_write_b128 v4, v[8:11] offset:{UB + 1024*i}")
    a("v_and_b32 v5, 31, v1")
    a("v_lshrrev_b32 v6, 5, v1")
    a("v_and_b32 v7, 7, v5")
    a("v_sub_u32 v7, 7, v7")
    a(f"v_mul_u32_u24 v7, {CS}, v7")
    a("v_lshrrev_b32 v8, 3, v5")
    a("v_sub_u32 v8, v6, v8")
    a("v_add_u32 v8, 3, v8")
    a("v_lshl_add_u32 v7, v8, 4, v7")
    a("v_add_u32 v20, s16, v7")
    a("v_mul_u32_u24 v8, 80, v5")
    a("v_lshl_add_u32 v9, v6, 4, v8")
    a(f"s_add_u32 s22, s16, {UD - 31*80}")
    a("v_add_u32 v21, s22, v9")
    a("v_lshl_add_u32 v9, v6, 3, v8")
    a(f"s_add_u32 s22, s16, {UD}")
    a("v_add_u32 v22, s22, v9")
    a("v_lshlrev_b32 v9, 6, v5")
    a("v_lshl_add_u32 v9, v6, 3, v9")
    a("s_lshl_b32 s22, s15, 12")
    a(f"s_add_u32 s22, s22, {AOT}")
    a("v_add_u32 v23, s22, v9")
    a("v_lshlrev_b32 v9, 4, v1")
    a(f"s_add_u32 s22, s16, {RSC}")
    a("v_add_u32 v24, s22, v9")
    for r in range(96, 128): a(f"v_mov_b32 v{r}, 0")
    a("s_waitcnt lgkmcnt(0)")
    a("s_lshl_b32 s22, s13, 4")
    a("s_lshr_b32 s18, s18, s22")
    a("s_lshl_b32 s18, s18, 16")
    a("s_waitcnt vmcnt(0)")
    a("s_barrier")
    a("s_cmp_eq_u32 s14, 1")
    a("s_cbranch_scc1 L_cv_roleB")
    conv_loop(a, [(1, e) for e in range(-1, 95)], {1: 96}, 20, 21)
    a("s_barrier")
    for qd in range(4):
        a(f"ds_read_b128 v[{64+4*qd}:{67+4*qd}], v24 offset:{1024*qd}")
    for qd in range(4):
        a(f"s_waitcnt lgkmcnt({3-qd})")
        for r in range(4):
            a(f"v_add_f32 v{96+4*qd+r}, v{96+4*qd+r}, v{64+4*qd+r}")
    conv_epilogue(a, 96, 1, 22, 23, "s18")
    a("s_branch L_cv_done")
    a("L_cv_roleB:")
    conv_loop(a, [(1, e) for e in range(95, 127)] + [(0, e) for e in range(-1, 63)], {1: 96, 0: 112}, 20, 21)
    for qd in range(4):
        a(f"ds_write_b128 v24, v[{96+4*qd}:{99+4*qd}] offset:{1024*qd}")
    a("s_waitcnt lgkmcnt(0)")
    a("s_barrier")
    conv_epilogue(a, 112, 0, 22, 23, "s18")
    a("L_cv_done:")
    a("s_endpgm")

if __name__ == "__main__":
    from k1 import gen_k1
    from k2 import gen_gemm1
    print(all(((i*13108)>>16) == i//5 for i in range(320)))
    a = Asm()
    gen_k1(a)
    gen_gemm1(a)
    gen_conv(a)
    txt = "; @launch kernel=prep_kernel grid=(576,1,1) block=(256,1,1) lds=33280\n"
    txt += "; @launch kernel=gemm1_kernel grid=(256,1,1) block=(512,1,1) lds=115200\n"
    txt += f"; @launch kernel=conv_kernel grid=(256,1,1) block=(256,1,1) lds={CONV_LDS}\n"
    txt += '.amdgcn_target "amdgcn-amd-amdhsa--gfx950"\n.text\n'
    txt += a.finish()
    txt += '.section .rodata,"a"\n' + kd("prep_kernel", 140) + kd("gemm1_kernel", 180) + kd("conv_kernel", 128)
    open("../t3.s", "w").write(txt)
```

```python
from asmlib import Asm
from k1 import XNA, XNT, KREV, KROW, HBUF, AOT, LOG2E, bf16r, kd
from k2 import Q

G2_AO = 131072
G2_SC = G2_AO + 8192
G2_LDS = G2_SC + 16384

def gen_gemm2(a):
    a(".globl gemm2_kernel")
    a(".p2align 8")
    a(".type gemm2_kernel,@function")
    a("gemm2_kernel:")
    a("s_cmp_ge_u32 s2, 256")
    a("s_cbranch_scc1 L_g2_done")
    a("s_load_dwordx2 s[4:5], s[0:1], 120")
    a("s_load_dwordx4 s[8:11], s[0:1], 96")
    a("s_load_dwordx2 s[6:7], s[0:1], 0")
    a("s_and_b32 s12, s2, 3")
    a("s_lshl_b32 s12, s12, 3")
    a("s_bfe_u32 s13, s2, 0x30003")
    a("s_add_u32 s12, s12, s13")
    a("s_bfe_u32 s13, s2, 0x10002")
    a("s_lshl_b32 s13, s13, 2")
    a("s_lshr_b32 s14, s2, 6")
    a("s_add_u32 s13, s13, s14")
    a("v_and_b32 v1, 63, v0")
    a("v_lshrrev_b32 v2, 6, v0")
    a("v_readfirstlane_b32 s15, v2")
    a("s_and_b32 s16, s15, 3")
    a("s_lshr_b32 s17, s15, 2")
    a("v_lshrrev_b32 v3, 4, v1")
    a("v_and_b32 v4, 15, v1")
    a("s_lshl_b32 s18, s12, 2")
    a("s_add_u32 s18, s18, s16")
    a("s_mul_i32 s19, s18, 56")
    a("s_mul_i32 s20, s17, 28")
    a("s_add_u32 s19, s19, s20")
    a("s_lshl_b32 s19, s19, 10")
    a(f"s_add_u32 s19, s19, {HBUF}")
    a("v_lshlrev_b32 v5, 4, v1")
    a("v_add_u32 v5, s19, v5")
    a("v_lshrrev_b32 v6, 3, v1")
    a("s_lshl_b32 s19, s16, 5")
    a("v_add_u32 v6, s19, v6")
    a("v_lshlrev_b32 v6, 10, v6")
    a("v_bfe_u32 v7, v1, 1, 2")
    a("v_bfe_u32 v8, v1, 4, 1")
    a("v_xor_b32 v7, v7, v8")
    a("v_and_b32 v8, 1, v1")
    a("v_lshl_add_u32 v9, v7, 1, v8")
    a("v_xor_b32 v10, 4, v9")
    a("s_mul_i32 s19, s17, 917504")
    a("s_lshl_b32 s20, s13, 7")
    a("s_add_u32 s19, s19, s20")
    a("v_add_u32 v6, s19, v6")
    a("v_lshl_add_u32 v7, v9, 4, v6")
    a("v_lshl_add_u32 v8, v10, 4, v6")
    a("s_lshl_b32 s21, s17, 14")
    a("s_lshl_b32 s22, s16, 12")
    a("s_add_u32 s22, s22, s21")
    a("v_bfe_u32 v9, v1, 2, 2")
    a("v_lshl_add_u32 v10, v3, 3, v9")
    a("v_lshlrev_b32 v10, 7, v10")
    a("v_and_b32 v11, 3, v1")
    a("v_lshl_add_u32 v10, v11, 3, v10")
    a("v_add_u32 v10, s21, v10")
    a("v_lshrrev_b32 v11, 1, v9")
    a("v_and_b32 v12, 1, v3")
    a("v_lshl_add_u32 v11, v12, 1, v11")
    for t in range(4):
        a(f"v_xor_b32 v12, {t}, v11")
        a(f"v_lshl_add_u32 v{20+t}, v12, 5, v10")
    a("s_lshl_b32 s23, s18, 4")
    a("v_add_u32 v12, s23, v4")
    a("v_lshlrev_b32 v12, 10, v12")
    a("v_lshl_add_u32 v12, v3, 3, v12")
    a("s_lshl_b32 s23, s17, 6")
    a("s_add_u32 s23, s23, s20")
    a("v_add_u32 v24, s23, v12")
    a("v_lshrrev_b32 v12, 3, v1")
    a("s_lshl_b32 s23, s13, 6")
    a("s_lshl_b32 s24, s15, 3")
    a("s_add_u32 s23, s23, s24")
    a("v_add_u32 v12, s23, v12")
    a("v_lshlrev_b32 v12, 12, v12")
    a("v_and_b32 v13, 7, v1")
    a("v_lshl_add_u32 v12, v13, 4, v12")
    a("s_lshl_b32 s23, s12, 7")
    a(f"s_add_u32 s23, s23, {AOT}")
    a("v_add_u32 v25, s23, v12")
    a("s_waitcnt lgkmcnt(0)")
    a("s_mov_b32 s28, s8"); a("s_mov_b32 s29, s9"); a("s_mov_b32 s30, 1835008"); a("s_mov_b32 s31, 0x00020000")
    a("s_mov_b32 s32, s4"); a("s_mov_b32 s33, s5"); a("s_mov_b32 s34, 0x10000000"); a("s_mov_b32 s35, 0x00020000")
    vm = Q(a, "vmcnt", 63); lg = Q(a, "lgkmcnt", 15)
    ACT = 32; WF = 144; AC = 176
    def dma_stage(st):
        for ii in range(4):
            a(f"s_add_u32 s24, s22, {(st & 3)*32768 + ii*1024}")
            a("s_mov_b32 m0, s24")
            a(f"s_mov_b32 s25, {st*131072 + ii*8192}")
            a(f"buffer_load_dwordx4 v{7 + (ii & 1)}, s[28:31], s25 offen lds")
            vm.issue(("w", st))
    def act_load(k):
        if k % 4 == 0 and k > 0:
            a("v_add_u32 v5, 0x1000, v5")
        a(f"global_load_dwordx4 v[{ACT+4*k}:{ACT+4*k+3}], v5, s[4:5] offset:{1024*(k%4)}")
        vm.issue(("a", k))
    for st in range(3):
        dma_stage(st)
        for k in range(4*st, 4*st+4): act_load(k)
    for k in range(12, 28): act_load(k)
    a("global_load_dwordx2 v[16:17], v24, s[6:7]")
    vm.issue("x")
    a("global_load_dwordx2 v[18:19], v24, s[6:7] offset:32")
    vm.issue("x")
    a("s_lshl_b32 s24, s15, 10")
    a(f"s_add_u32 s24, s24, {G2_AO}")
    a("s_mov_b32 m0, s24")
    a("buffer_load_dwordx4 v25, s[32:35], 0 offen lds")
    vm.issue("ao")
    for r in range(16): a(f"v_mov_b32 v{AC+r}, 0")
    def reads(k, t):
        b = WF + 16*(k & 1) + 4*t
        ks = k % 4
        a(f"ds_read_b64_tr_b16 v[{b}:{b+1}], v{20+t} offset:{ks*4096}")
        lg.issue((k, t))
        a(f"ds_read_b64_tr_b16 v[{b+2}:{b+3}], v{20+t} offset:{ks*4096 + 512}")
        lg.issue((k, t))
    def begin_stage(st):
        vm.wait(("w", st))
        lg.waitall()
        a("s_barrier")
        if st + 3 < 7: dma_stage(st + 3)
        if st > 0:
            for t in range(4):
                if st % 4 == 0: a(f"v_subrev_u32 v{20+t}, {3*32768}, v{20+t}")
                else: a(f"v_add_u32 v{20+t}, 0x8000, v{20+t}")
    begin_stage(0)
    for t in range(4): reads(0, t)
    for k in range(28):
        if k + 1 < 28 and (k + 1) % 4 == 0:
            begin_stage((k + 1)//4)
        vm.wait(("a", k))
        for t in range(4):
            if k + 1 < 28: reads(k + 1, t)
            lg.wait((k, t))
            b = WF + 16*(k & 1) + 4*t
            a(f"v_mfma_f32_16x16x32_bf16 v[{AC+4*t}:{AC+4*t+3}], v[{b}:{b+3}], v[{ACT+4*k}:{ACT+4*k+3}], v[{AC+4*t}:{AC+4*t+3}]")
    a("v_lshlrev_b32 v9, 4, v1")
    a("s_lshl_b32 s24, s15, 11")
    a(f"s_add_u32 s24, s24, {G2_SC}")
    a("v_add_u32 v10, s24, v9")
    a("s_xor_b32 s25, s15, 4")
    a("s_lshl_b32 s25, s25, 11")
    a(f"s_add_u32 s25, s25, {G2_SC}")
    a("v_add_u32 v11, s25, v9")
    a("s_cmp_eq_u32 s17, 1")
    a("s_cbranch_scc1 L_g2_kh1")
    a(f"ds_write_b128 v10, v[{AC+8}:{AC+11}]")
    a(f"ds_write_b128 v10, v[{AC+12}:{AC+15}] offset:1024")
    a("s_branch L_g2_x")
    a("L_g2_kh1:")
    a(f"ds_write_b128 v10, v[{AC}:{AC+3}]")
    a(f"ds_write_b128 v10, v[{AC+4}:{AC+7}] offset:1024")
    for r in range(8): a(f"v_mov_b32 v{AC+r}, v{AC+8+r}")
    a("L_g2_x:")
    a("s_waitcnt vmcnt(0) lgkmcnt(0)")
    a("s_barrier")
    a("ds_read_b128 v[32:35], v11")
    a("ds_read_b128 v[36:39], v11 offset:1024")
    a("v_lshlrev_b32 v12, 9, v3")
    a("v_lshl_add_u32 v12, v4, 1, v12")
    a("s_lshl_b32 s24, s17, 12")
    a("s_lshl_b32 s25, s16, 5")
    a("s_add_u32 s24, s24, s25")
    a(f"s_add_u32 s24, s24, {G2_AO}")
    a("v_add_u32 v12, s24, v12")
    for tt in range(2):
        for r in range(4):
            a(f"ds_read_u16 v{40+4*tt+r}, v12 offset:{(16*tt + r)*128}")
    a("s_waitcnt lgkmcnt(0)")
    for tt in range(2):
        for h in range(2):
            x0, x1 = AC + 4*tt + 2*h, AC + 4*tt + 2*h + 1
            a(f"v_add_f32 v{x0}, v{x0}, v{32+4*tt+2*h}")
            a(f"v_add_f32 v{x1}, v{x1}, v{33+4*tt+2*h}")
            a(f"v_cvt_pk_bf16_f32 v48, v{x0}, v{x1}")
            a(f"v_lshlrev_b32 v{x0}, 16, v48")
            a(f"v_and_b32 v{x1}, 0xffff0000, v48")
            xr = 16 + 2*tt + h
            a(f"v_lshlrev_b32 v49, 16, v{xr}")
            a(f"v_and_b32 v50, 0xffff0000, v{xr}")
            a(f"v_lshlrev_b32 v51, 16, v{40+4*tt+2*h}")
            a(f"v_lshlrev_b32 v52, 16, v{41+4*tt+2*h}")
            a("v_add_f32 v49, v49, v51")
            a("v_add_f32 v50, v50, v52")
            a("v_cvt_pk_bf16_f32 v48, v49, v50")
            a("v_lshlrev_b32 v49, 16, v48")
            a("v_and_b32 v50, 0xffff0000, v48")
            a(f"v_add_f32 v49, v49, v{x0}")
            a(f"v_add_f32 v50, v50, v{x1}")
            a(f"v_cvt_pk_bf16_f32 v{54+2*tt+h}, v49, v50")
        a(f"global_store_dwordx2 v24, v[{54+2*tt}:{55+2*tt}], s[10:11] offset:{32*tt}")
    a("L_g2_done:")
    a("s_endpgm")

HEADER = open("parallel_sum__ssm_conv_s4__dense_activation_mish__prompt.s.ref").read().split("; Override launch")[0]

if __name__ == "__main__":
    from k1 import gen_k1
    from k2 import gen_gemm1
    from k3 import gen_conv, CONV_LDS
    a = Asm()
    gen_k1(a)
    gen_gemm1(a)
    gen_conv(a)
    gen_gemm2(a)
    txt = HEADER
    txt += "; @launch kernel=prep_kernel grid=(576,1,1) block=(256,1,1) lds=33280\n"
    txt += "; @launch kernel=gemm1_kernel grid=(256,1,1) block=(512,1,1) lds=115200\n"
    txt += f"; @launch kernel=conv_kernel grid=(256,1,1) block=(256,1,1) lds={CONV_LDS}\n"
    txt += f"; @launch kernel=gemm2_kernel grid=(256,1,1) block=(512,1,1) lds={G2_LDS}\n"
    txt += '.amdgcn_target "amdgcn-amd-amdhsa--gfx950"\n.text\n'
    txt += a.finish()
    txt += '.section .rodata,"a"\n' + kd("prep_kernel", 140) + kd("gemm1_kernel", 180) + kd("conv_kernel", 128) + kd("gemm2_kernel", 192)
    open("../t4.s", "w").write(txt)
```

```python
import re

TRANS = ("v_exp_f32", "v_log_f32", "v_rcp_f32", "v_rsq_f32", "v_sqrt_f32", "v_sin_f32", "v_cos_f32")

def regs_of(tok):
    tok = tok.strip()
    tok = tok.replace("abs(", "").replace(")", "").replace("|", "")
    if tok.startswith("-"):
        tok = tok[1:]
    m = re.fullmatch(r"([vsa])\[(\d+):(\d+)\]", tok)
    if m:
        return {(m.group(1), i) for i in range(int(m.group(2)), int(m.group(3)) + 1)}
    m = re.fullmatch(r"([vsa])(\d+)", tok)
    if m:
        return {(m.group(1), int(m.group(2)))}
    if tok in ("vcc", "vcc_lo", "vcc_hi"):
        return {("vcc", 0)}
    if tok in ("exec", "exec_lo", "exec_hi"):
        return {("exec", 0)}
    if tok == "m0":
        return {("m0", 0)}
    return set()

class Ins:
    def __init__(self, text):
        self.text = text
        t = text.split(";")[0].strip()
        self.label = t.endswith(":")
        self.directive = t.startswith(".")
        self.mn = ""
        self.dst = set(); self.src = set()
        self.kind = "other"
        if not t or self.label or self.directive:
            self.kind = "none"
            return
        parts = t.split(None, 1)
        self.mn = parts[0]
        ops = []
        if len(parts) > 1:
            ops = [o.strip() for o in re.split(r",(?![^\[]*\])", parts[1])]
        clean = []
        for o in ops:
            clean.append(o.split()[0] if o else o)
        self.mods = t
        mn = self.mn
        ops = clean
        if mn.startswith("v_mfma"):
            self.kind = "mfma"
            self.dst = regs_of(ops[0])
            self.srcA = regs_of(ops[1]); self.srcB = regs_of(ops[2]); self.srcC = regs_of(ops[3])
            self.src = self.srcA | self.srcB | self.srcC
            self.passes = 8 if "32x32x16" in mn else 4
            if "32x32x2_f32" in mn: self.passes = 16
            if "16x16x4_f32" in mn: self.passes = 8
        elif mn.startswith("v_cmp"):
            self.kind = "valu"
            self.dst = regs_of(ops[0])
            for o in ops[1:]: self.src |= regs_of(o)
        elif mn.startswith("v_permlane") and "swap" in mn:
            self.kind = "permlane"
            self.dst = regs_of(ops[0]) | regs_of(ops[1])
            self.src = set(self.dst)
        elif mn.startswith("v_readfirstlane") or mn.startswith("v_readlane"):
            self.kind = "readlane"
            self.dst = regs_of(ops[0])
            for o in ops[1:]: self.src |= regs_of(o)
        elif mn.startswith("v_"):
            self.kind = "trans" if mn.split("_e")[0] in TRANS or mn in TRANS else "valu"
            self.dst = regs_of(ops[0])
            rest = ops[1:]
            if mn.startswith(("v_add_co", "v_addc_co", "v_sub_co", "v_subb_co")):
                self.dst |= regs_of(ops[1]); rest = ops[2:]
            for o in rest: self.src |= regs_of(o)
            if mn.startswith(("v_fmac", "v_pk_fmac")):
                self.src |= self.dst
            if "dpp" in mn or "row_" in t or "quad_perm" in t:
                self.kind = "dpp"
        elif mn.startswith("ds_"):
            self.kind = "ds"
            if mn.startswith(("ds_read", "ds_bpermute", "ds_permute", "ds_swizzle")):
                self.dst = regs_of(ops[0])
                for o in ops[1:]: self.src |= regs_of(o)
            else:
                for o in ops: self.src |= regs_of(o)
        elif mn.startswith(("buffer_", "global_")):
            self.kind = "vmem"
            is_lds = " lds" in t
            if "load" in mn and not is_lds:
                self.dst = regs_of(ops[0])
                for o in ops[1:]: self.src |= regs_of(o)
            else:
                for o in ops: self.src |= regs_of(o)
            if is_lds: self.src |= {("m0", 0)}
            self.widestore = ("store" in mn) and ("x4" in mn or "x3" in mn)
            if self.widestore:
                if mn.startswith("buffer_"): self.data = regs_of(ops[0])
                else: self.data = regs_of(ops[1])
        elif mn.startswith("s_"):
            self.kind = "salu"
            if mn in ("s_nop", "s_waitcnt", "s_barrier", "s_endpgm", "s_branch", "s_setprio", "s_sleep") or mn.startswith(("s_cbranch", "s_cmp")):
                for o in ops: self.src |= regs_of(o)
            else:
                self.dst = regs_of(ops[0]) if ops else set()
                for o in ops[1:]: self.src |= regs_of(o)
                if "saveexec" in mn: self.dst |= {("exec", 0)}
        self.states = 1
        if mn == "s_nop":
            self.states = int(ops[0], 0) + 1

def is_valu(i): return i.kind in ("valu", "trans", "dpp", "permlane", "readlane")

def required(p, c):
    req = 0
    pv = {r for r in p.dst if r[0] in ("v", "a")}
    ps = {r for r in p.dst if r[0] in ("s", "vcc")}
    if p.kind == "trans" and (pv & c.src) and c.kind != "trans":
        req = max(req, 1)
    if is_valu(p):
        if c.kind == "mfma" and (pv & c.src): req = max(req, 2)
        if c.kind in ("permlane", "dpp") and (pv & c.src): req = max(req, 2)
        if c.kind == "readlane" and (pv & c.src): req = max(req, 1)
        if ps:
            if is_valu(c) and (ps & c.src): req = max(req, 2)
            if c.kind == "readlane" and (ps & c.src): req = max(req, 4)
            if c.kind == "vmem" and (ps & c.src): req = max(req, 5)
            if c.kind == "salu" and (ps & c.src): req = max(req, 1)
        if ("exec", 0) in p.dst: req = max(req, 5)
    if p.kind == "mfma":
        P = p.passes
        full = {4: 8, 8: 12, 16: 20}[P]
        part = {4: 6, 8: 10, 16: 18}[P]
        war = {4: 3, 8: 7, 16: 15}[P]
        if c.kind == "mfma":
            if (pv & (c.srcA | c.srcB)): req = max(req, full)
            if (pv & c.srcC):
                if c.srcC == pv and c.passes == P: req = max(req, 0)
                else: req = max(req, part)
            if (pv & c.dst) and not (c.srcC == pv and c.passes == P): req = max(req, part)
        else:
            if (pv & (c.src | c.dst)): req = max(req, full)
            if is_valu(c) and (p.srcC & c.dst): req = max(req, war)
    if p.kind == "salu" and ("m0", 0) in p.dst and ("m0", 0) in c.src:
        req = max(req, 1)
    if p.kind == "vmem" and getattr(p, "widestore", False):
        if (p.data & c.dst): req = max(req, 2)
    return req

STAMPS = False
class Asm:
    def __init__(self):
        self.lines = []
        self.nst = 0
    def stamp_reset(self): self.nst = 0
    def stamp(self):
        if not STAMPS: return
        i = self.nst; self.nst += 1
        self(f"s_memtime s[{64+2*i}:{65+2*i}]")
        self("s_waitcnt lgkmcnt(0)")
    def stamp_dump(self, region):
        if not STAMPS: return
        self("s_waitcnt vmcnt(0) lgkmcnt(0)")
        self("s_mov_b64 exec, -1")
        self("v_lshrrev_b32 v2, 6, v0")
        self("s_lshl_b32 s3, s2, 4")
        self("v_add_u32 v2, s3, v2")
        self("v_lshlrev_b32 v2, 6, v2")
        self(f"v_add_u32 v2, {(32<<20) + (region<<20)}, v2")
        for i in range(self.nst):
            self(f"v_mov_b32 v3, s{64+2*i}")
            self(f"global_store_dword v2, v3, s[4:5] offset:{4*i}")
    def __call__(self, s):
        for l in s.strip("\n").split("\n"):
            if l.strip():
                self.lines.append(l.strip())
    def finish(self, window=24):
        out = []
        for l in self.lines:
            c = Ins(l)
            if c.kind != "none":
                dist = 0
                need = 0
                for p in reversed(out):
                    if p.kind == "none":
                        continue
                    r = required(p, c)
                    if r > dist:
                        need = max(need, r - dist)
                    dist += p.states
                    if dist > window: break
                while need > 0:
                    n = min(need, 16)
                    out.append(Ins(f"s_nop {n-1}"))
                    need -= n
            out.append(c)
        txt = []
        for i in out:
            if i.label or i.directive: txt.append(i.text)
            else: txt.append("    " + i.text)
        return "\n".join(txt) + "\n"
```

```python
from asmlib import Asm

XNA = 0
XNT = 2 << 20
KREV = 4 << 20
KROW = 4224
HBUF = 8 << 20
AOT = 16 << 20

PREFETCH = True
LOG2E = "0x3fb8aa3b"
INV2PI = "0x3e22f983"

def reduce_q(a, v, t):
    a(f"v_add_f32_dpp v{v}, v{v}, v{v} row_ror:8 row_mask:0xf bank_mask:0xf")
    a(f"v_mov_b32 v{t}, v{v}")
    a(f"v_permlane16_swap_b32 v{v}, v{t}")
    a(f"v_add_f32 v{v}, v{v}, v{t}")
    a(f"v_mov_b32 v{t}, v{v}")
    a(f"v_permlane32_swap_b32 v{v}, v{t}")
    a(f"v_add_f32 v{v}, v{v}, v{t}")

def bf16r(a, dst, src):
    a(f"v_cvt_pk_bf16_f32 v{dst}, v{src}, v{src}")
    a(f"v_lshlrev_b32 v{dst}, 16, v{dst}")

def ln_role(a):
    RS = 1040
    a.stamp_reset(); a.stamp()
    a("s_load_dwordx2 s[6:7], s[0:1], 0")
    a("v_and_b32 v1, 63, v0")
    a("v_lshrrev_b32 v2, 6, v0")
    a("v_and_b32 v3, 7, v1")
    a("v_lshrrev_b32 v4, 3, v1")
    a("v_lshl_add_u32 v5, v2, 3, v3")
    a("s_lshl_b32 s3, s2, 5")
    a("v_add_u32 v6, s3, v5")
    a("v_lshlrev_b32 v7, 10, v6")
    a("v_lshl_add_u32 v7, v4, 4, v7")
    a("s_waitcnt lgkmcnt(0)")
    for i in range(8):
        a(f"global_load_dwordx4 v[{16+4*i}:{19+4*i}], v7, s[6:7] offset:{128*i}")
    F = 64
    for k in range(32):
        if k % 4 == 0:
            a(f"s_waitcnt vmcnt({7 - k//4})")
        a(f"v_lshlrev_b32 v{F+2*k}, 16, v{16+k}")
        a(f"v_and_b32 v{F+2*k+1}, 0xffff0000, v{16+k}")
    a.stamp()
    for j in range(4):
        a(f"v_add_f32 v{8+j}, v{F+j}, v{F+4+j}")
    for k in range(8, 64, 4):
        for j in range(4):
            a(f"v_add_f32 v{8+j}, v{8+j}, v{F+k+j}")
    a("v_add_f32 v8, v8, v9"); a("v_add_f32 v10, v10, v11"); a("v_add_f32 v8, v8, v10")
    reduce_q(a, 8, 9)
    a("v_mul_f32 v8, 0x3b000000, v8")
    for j in range(4):
        a(f"v_mov_b32 v{10+j}, 0")
    for k in range(64):
        a(f"v_sub_f32 v14, v{F+k}, v8") if k % 2 == 0 else a(f"v_sub_f32 v15, v{F+k}, v8")
        t = 14 + (k % 2)
        a(f"v_fmac_f32 v{10+(k%4)}, v{t}, v{t}")
    a("v_add_f32 v10, v10, v11"); a("v_add_f32 v12, v12, v13"); a("v_add_f32 v10, v10, v12")
    reduce_q(a, 10, 9)
    a("v_mul_f32 v10, 0x3b000000, v10")
    bf16r(a, 8, 8)
    bf16r(a, 10, 10)
    a("v_add_f32 v10, 0x3727c5ac, v10")
    bf16r(a, 10, 10)
    a("v_sqrt_f32 v10, v10")
    bf16r(a, 10, 10)
    a("v_rcp_f32 v10, v10")
    for k in range(32):
        f0, f1 = F + 2*k, F + 2*k + 1
        a(f"v_sub_f32 v{f0}, v{f0}, v8")
        a(f"v_sub_f32 v{f1}, v{f1}, v8")
        a(f"v_cvt_pk_bf16_f32 v{16+k}, v{f0}, v{f1}")
        a(f"v_lshlrev_b32 v{f0}, 16, v{16+k}")
        a(f"v_and_b32 v{f1}, 0xffff0000, v{16+k}")
        a(f"v_mul_f32 v{f0}, v{f0}, v10")
        a(f"v_mul_f32 v{f1}, v{f1}, v10")
        a(f"v_cvt_pk_bf16_f32 v{16+k}, v{f0}, v{f1}")
    a.stamp()
    a("v_lshrrev_b32 v11, 4, v6")
    a("v_lshlrev_b32 v11, 14, v11")
    a("v_and_b32 v12, 15, v6")
    a("v_lshl_add_u32 v11, v12, 4, v11")
    a("v_lshl_add_u32 v11, v4, 10, v11")
    a("v_add_u32 v12, 0x2000, v11")
    for i in range(8):
        base = 11 + (i & 1)
        a(f"global_store_dwordx4 v{base}, v[{16+4*i}:{19+4*i}], s[4:5] offset:{(i>>1)*256}")
    a(f"v_mul_u32_u24 v13, {RS}, v5")
    a("v_lshl_add_u32 v13, v4, 4, v13")
    for i in range(8):
        a(f"ds_write_b128 v13, v[{16+4*i}:{19+4*i}] offset:{128*i}")
    a("s_waitcnt lgkmcnt(0)")
    a("s_barrier")
    a.stamp()
    a("v_lshrrev_b32 v8, 4, v1")
    a("v_bfe_u32 v9, v1, 2, 2")
    a("v_and_b32 v10, 3, v1")
    a("v_lshl_add_u32 v9, v8, 3, v9")
    a(f"v_mul_u32_u24 v9, {RS}, v9")
    a("v_lshl_add_u32 v9, v10, 3, v9")
    a("v_lshl_add_u32 v9, v2, 5, v9")
    a("v_and_b32 v10, 15, v1")
    a("v_lshl_add_u32 v10, v2, 4, v10")
    a("v_lshlrev_b32 v10, 12, v10")
    a("v_lshl_add_u32 v10, v8, 4, v10")
    a("s_lshl_b32 s3, s2, 6")
    a(f"s_add_u32 s3, s3, {XNT}")
    a("v_add_u32 v10, s3, v10")
    for it in range(8):
        a(f"ds_read_b64_tr_b16 v[{16+4*it}:{17+4*it}], v9 offset:{128*it}")
        a(f"ds_read_b64_tr_b16 v[{18+4*it}:{19+4*it}], v9 offset:{128*it + 4*RS}")
    for it in range(8):
        a(f"s_waitcnt lgkmcnt({14-2*it})")
        a(f"global_store_dwordx4 v10, v[{16+4*it}:{19+4*it}], s[4:5]")
        if it < 7:
            a("v_add_u32 v10, 0x40000, v10")
    a.stamp(); a.stamp_dump(0)
    a("s_branch L_prep_done")

def cexp(a, vval, lr2, lir, re, im, t0):
    a(f"v_mul_f32 v{t0}, v{lr2}, v{vval}")
    a(f"v_mul_f32 v{im}, v{lir}, v{vval}")
    a(f"v_exp_f32 v{t0}, v{t0}")
    a(f"v_fract_f32 v{im}, v{im}")
    a(f"v_cos_f32 v{re}, v{im}")
    a(f"v_sin_f32 v{im}, v{im}")
    a(f"v_mul_f32 v{re}, v{re}, v{t0}")
    a(f"v_mul_f32 v{im}, v{im}, v{t0}")

def split(a, re, im, h, l, t0, t1):
    a(f"v_cvt_pk_bf16_f32 v{h}, v{re}, v{im}")
    a(f"v_lshlrev_b32 v{t0}, 16, v{h}")
    a(f"v_and_b32 v{t1}, 0xffff0000, v{h}")
    a(f"v_sub_f32 v{t0}, v{re}, v{t0}")
    a(f"v_sub_f32 v{t1}, v{im}, v{t1}")
    a(f"v_cvt_pk_bf16_f32 v{l}, v{t0}, v{t1}")

def kgen_role(a):
    a("L_kgen:")
    a.stamp_reset(); a.stamp()
    a("s_load_dwordx4 s[8:11], s[0:1], 8")
    a("s_load_dwordx4 s[12:15], s[0:1], 24")
    a("s_load_dwordx4 s[16:19], s[0:1], 40")
    a("s_load_dwordx2 s[20:21], s[0:1], 56")
    a("s_sub_u32 s3, s2, 64")
    a("v_and_b32 v1, 63, v0")
    a("v_lshrrev_b32 v2, 6, v0")
    a("v_and_b32 v3, 15, v1")
    a("v_lshrrev_b32 v4, 4, v1")
    a("s_lshl_b32 s22, s3, 8")
    a("v_lshlrev_b32 v10, 6, v2")
    a("v_lshl_add_u32 v10, v4, 3, v10")
    a("v_add_u32 v10, s22, v10")
    a("s_lshr_b32 s23, s3, 1")
    a("s_lshl_b32 s23, s23, 2")
    a("s_waitcnt lgkmcnt(0)")
    a("s_load_dword s24, s[20:21], s23")
    ptr = ["s[8:9]", "s[10:11]", "s[12:13]", "s[14:15]", "s[16:17]", "s[18:19]"]
    for arr in range(6):
        for ks in range(2):
            r = 16 + (arr*2 + ks)*2
            a(f"global_load_dwordx2 v[{r}:{r+1}], v10, {ptr[arr]} offset:{32*ks}")
    if PREFETCH:
        a("s_load_dwordx2 s[28:29], s[0:1], 80")
        a("s_load_dwordx2 s[30:31], s[0:1], 96")
        a("s_lshr_b32 s32, s3, 3")
        a("s_bfe_u32 s33, s3, 0x10002")
        a("s_mul_i32 s34, s32, 28672")
        a("s_mul_i32 s35, s33, 1792")
        a("s_add_u32 s34, s34, s35")
        a("s_mul_i32 s36, s32, 28672")
        a("s_lshl_b32 s35, s33, 9")
        a("s_add_u32 s36, s36, s35")
        a("s_waitcnt lgkmcnt(0)")
        for k in range(4):
            a(f"v_add_u32 v56, {256*k}, v0")
            a("v_min_u32 v56, 895, v56")
            a("v_mul_u32_u24 v57, 9363, v56")
            a("v_lshrrev_b32 v57, 20, v57")
            a("v_mul_u32_u24 v58, 112, v57")
            a("v_sub_u32 v58, v56, v58")
            a("v_mul_u32_u24 v57, 3584, v57")
            a("v_lshl_add_u32 v57, v58, 4, v57")
            a("v_add_u32 v57, s34, v57")
            a(f"global_load_dwordx4 v[{148+8*k}:{151+8*k}], v57, s[28:29]")
            a("v_lshrrev_b32 v57, 5, v56")
            a("v_and_b32 v58, 31, v56")
            a("v_lshlrev_b32 v57, 10, v57")
            a("v_lshl_add_u32 v57, v58, 4, v57")
            a("v_add_u32 v57, s36, v57")
            a(f"global_load_dwordx4 v[{152+8*k}:{155+8*k}], v57, s[30:31]")
    a("v_lshlrev_b32 v5, 3, v3")
    a("v_cvt_f32_u32 v5, v5")
    a("v_lshrrev_b32 v6, 3, v3")
    a("v_and_b32 v11, 7, v3")
    a("v_lshl_add_u32 v6, v6, 7, v11")
    a("v_cvt_f32_u32 v6, v6")
    a("v_lshrrev_b32 v7, 2, v3")
    a("v_lshlrev_b32 v7, 7, v7")
    a("v_and_b32 v11, 3, v3")
    a("v_lshl_add_u32 v7, v11, 1, v7")
    a("v_add_u32 v7, 0x100, v7")
    a("v_subrev_u32 v11, 8, v3")
    a("v_lshrrev_b32 v11, 1, v11")
    a("v_lshlrev_b32 v11, 7, v11")
    a("v_and_b32 v12, 1, v3")
    a("v_lshl_add_u32 v11, v12, 2, v11")
    a("v_add_u32 v11, 0x200, v11")
    a("v_cmp_gt_u32 vcc, 8, v3")
    a("v_cndmask_b32 v7, v11, v7, vcc")
    a("v_cvt_f32_u32 v7, v7")
    a("v_lshlrev_b32 v8, 7, v3")
    a("v_add_u32 v8, 0x400, v8")
    a("v_cmp_gt_u32 vcc, 9, v3")
    a("v_cndmask_b32 v8, 0, v8, vcc")
    a("v_cvt_f32_u32 v8, v8")
    a("s_waitcnt lgkmcnt(0)")
    a("s_and_b32 s25, s3, 1")
    a("s_lshl_b32 s25, s25, 4")
    a("s_lshr_b32 s24, s24, s25")
    a("s_lshl_b32 s24, s24, 16")
    a("v_mov_b32 v9, s24")
    a(f"v_mul_f32 v9, {LOG2E}, v9")
    a("v_exp_f32 v9, v9")
    bf16r(a, 9, 9)
    for j in range(8):
        g = 140 + j
        a(f"v_lshlrev_b32 v40, 3, v0")
        a(f"v_sub_u32 v40, {2047 - j}, v40")
        a("v_cvt_f32_u32 v40, v40")
        bf16r(a, 40, 40)
        a("v_cvt_u32_f32 v40, v40")
        a("v_lshrrev_b32 v41, 7, v40")
        a("v_and_b32 v42, 7, v40")
        a("v_bfe_u32 v43, v40, 3, 4")
        a("v_lshl_add_u32 v44, v41, 3, v42")
        a("v_lshrrev_b32 v45, 1, v42")
        a("v_lshl_add_u32 v45, v41, 2, v45")
        a("v_add_u32 v45, 8, v45")
        a("v_lshrrev_b32 v46, 2, v42")
        a("v_lshl_add_u32 v46, v41, 1, v46")
        a("v_add_u32 v46, 16, v46")
        a("v_add_u32 v47, 24, v41")
        a("v_cmp_gt_u32 vcc, 8, v41")
        a("v_cndmask_b32 v47, v47, v46, vcc")
        a("v_cmp_gt_u32 vcc, 4, v41")
        a("v_cndmask_b32 v47, v47, v45, vcc")
        a("v_cmp_gt_u32 vcc, 2, v41")
        a("v_cndmask_b32 v47, v47, v44, vcc")
        a("v_lshrrev_b32 v44, 2, v47")
        a("v_lshl_add_u32 v44, v44, 4, v43")
        a("v_lshlrev_b32 v44, 4, v44")
        a("v_and_b32 v45, 3, v47")
        a(f"v_lshl_add_u32 v{g}, v45, 2, v44")
    a("s_waitcnt vmcnt(0)")
    a.stamp()
    XH = lambda t, ks: 64 + (t*2 + ks)*8
    XL = lambda t, ks: 64 + (t*2 + ks)*8 + 4
    YH = lambda ks: 112 + ks*8
    YL = lambda ks: 112 + ks*8 + 4
    for ks in range(2):
        for q in range(4):
            for arr in range(6):
                r = 16 + (arr*2 + ks)*2 + (q >> 1)
                if q & 1: a(f"v_and_b32 v{40+arr}, 0xffff0000, v{r}")
                else: a(f"v_lshlrev_b32 v{40+arr}, 16, v{r}")
            a("v_mul_f32 v46, v9, v40")
            a(f"v_mul_f32 v46, {LOG2E}, v46")
            a("v_mul_f32 v47, v9, v41")
            a(f"v_mul_f32 v47, {INV2PI}, v47")
            a("v_mul_f32 v42, v9, v42")
            a("v_mul_f32 v43, v9, v43")
            a("v_mul_f32 v48, v44, v42")
            a("v_fma_f32 v48, -v45, v43, v48")
            a("v_mul_f32 v49, v44, v43")
            a("v_fma_f32 v49, v45, v42, v49")
            cexp(a, 5, 46, 47, 50, 51, 52)
            a("v_mul_f32 v53, v48, v50")
            a("v_fma_f32 v53, -v49, v51, v53")
            a("v_mul_f32 v54, v48, v51")
            a("v_fma_f32 v54, v49, v50, v54")
            a("v_sub_f32 v54, 0, v54")
            split(a, 53, 54, YH(ks)+q, YL(ks)+q, 55, 56)
            for t in range(3):
                cexp(a, 6+t, 46, 47, 50, 51, 52)
                split(a, 50, 51, XH(t, ks)+q, XL(t, ks)+q, 55, 56)
    a.stamp()
    for r in range(128, 140):
        a(f"v_mov_b32 v{r}, 0")
    for t in range(3):
        c = f"v[{128+4*t}:{131+4*t}]"
        for ks in range(2):
            xh = f"v[{XH(t,ks)}:{XH(t,ks)+3}]"; xl = f"v[{XL(t,ks)}:{XL(t,ks)+3}]"
            yh = f"v[{YH(ks)}:{YH(ks)+3}]"; yl = f"v[{YL(ks)}:{YL(ks)+3}]"
            a(f"v_mfma_f32_16x16x32_bf16 {c}, {xl}, {yh}, {c}")
            a(f"v_mfma_f32_16x16x32_bf16 {c}, {xh}, {yl}, {c}")
            a(f"v_mfma_f32_16x16x32_bf16 {c}, {xh}, {yh}, {c}")
    a.stamp()
    a("v_mul_u32_u24 v40, 3072, v2")
    a("v_lshl_add_u32 v40, v1, 4, v40")
    for t in range(3):
        a(f"ds_write_b128 v40, v[{128+4*t}:{131+4*t}] offset:{1024*t}")
    a("s_waitcnt lgkmcnt(0)")
    a("s_barrier")
    for j in range(8):
        for w in range(4):
            a(f"ds_read_b32 v{64+4*j+w}, v{140+j} offset:{3072*w}")
    for j in range(8):
        a(f"s_waitcnt lgkmcnt({min(15, 28-4*j)})")
        a(f"v_add_f32 v{64+4*j}, v{64+4*j}, v{65+4*j}")
        a(f"v_add_f32 v{66+4*j}, v{66+4*j}, v{67+4*j}")
        a(f"v_add_f32 v{64+4*j}, v{64+4*j}, v{66+4*j}")
    for k in range(4):
        a(f"v_cvt_pk_bf16_f32 v{40+k}, v{64+8*k}, v{68+8*k}")
    a(f"s_mul_i32 s22, s3, {KROW}")
    a(f"s_add_u32 s22, s22, {KREV}")
    a("v_lshlrev_b32 v44, 4, v0")
    a("v_add_u32 v44, s22, v44")
    a("global_store_dwordx4 v44, v[40:43], s[4:5]")
    a.stamp(); a.stamp_dump(0)
    a("v_mov_b32 v48, 0"); a("v_mov_b32 v49, 0"); a("v_mov_b32 v50, 0"); a("v_mov_b32 v51, 0")
    a("v_add_u32 v44, 0x1000, v44")
    a("v_cmp_gt_u32 vcc, 8, v0")
    a("s_and_saveexec_b64 s[26:27], vcc")
    a("s_cbranch_execz L_prep_done")
    a("global_store_dwordx4 v44, v[48:51], s[4:5]")

def gen_k1(a):
    a(".globl prep_kernel")
    a(".p2align 8")
    a(".type prep_kernel,@function")
    a("prep_kernel:")
    a("s_cmp_ge_u32 s2, 576")
    a("s_cbranch_scc1 L_prep_done")
    a("s_load_dwordx2 s[4:5], s[0:1], 120")
    a("s_cmp_ge_u32 s2, 64")
    a("s_cbranch_scc1 L_kgen")
    ln_role(a)
    kgen_role(a)
    a("L_prep_done:")
    a("s_endpgm")

def kd(name, vgpr, sgpr=102):
    return f""".p2align 6
.amdhsa_kernel {name}
  .amdhsa_next_free_vgpr {vgpr}
  .amdhsa_next_free_sgpr {sgpr}
  .amdhsa_accum_offset {(vgpr+3)//4*4}
  .amdhsa_group_segment_fixed_size 0
  .amdhsa_kernarg_size 128
  .amdhsa_user_sgpr_count 2
  .amdhsa_user_sgpr_kernarg_segment_ptr 1
  .amdhsa_system_sgpr_workgroup_id_x 1
.end_amdhsa_kernel
"""

if __name__ == "__main__":
    a = Asm()
    gen_k1(a)
    txt = "; @launch kernel=prep_kernel grid=(576,1,1) block=(256,1,1) lds=33280\n"
    txt += '.amdgcn_target "amdgcn-amd-amdhsa--gfx950"\n.text\n'
    txt += a.finish()
    txt += '.section .rodata,"a"\n' + kd("prep_kernel", 140)
    open("../t1.s", "w").write(txt)
```

```python
import asmlib
from asmlib import Asm
from k1 import XNA, XNT, KREV, KROW, HBUF, AOT, LOG2E, bf16r, kd

class Q:
    def __init__(self, a, name, maxc):
        self.a = a; self.name = name; self.maxc = maxc; self.q = []
    def issue(self, tag): self.q.append(tag)
    def wait(self, tag):
        if tag not in self.q: return
        idx = len(self.q) - 1 - self.q[::-1].index(tag)
        n = len(self.q) - 1 - idx
        n = min(n, self.maxc)
        self.a(f"s_waitcnt {self.name}({n})")
        self.q = self.q[len(self.q) - n:] if n > 0 else []
    def waitall(self):
        self.a(f"s_waitcnt {self.name}(0)")
        self.q = []

def mish_pair(a, x0, x1, b0, b1, out, t):
    a(f"v_cvt_pk_bf16_f32 v{t}, v{x0}, v{x1}")
    a(f"v_lshlrev_b32 v{x0}, 16, v{t}")
    a(f"v_and_b32 v{x1}, 0xffff0000, v{t}")
    a(f"v_add_f32 v{x0}, v{x0}, v{b0}")
    a(f"v_add_f32 v{x1}, v{x1}, v{b1}")
    a(f"v_cvt_pk_bf16_f32 v{t}, v{x0}, v{x1}")
    a(f"v_lshlrev_b32 v{x0}, 16, v{t}")
    a(f"v_and_b32 v{x1}, 0xffff0000, v{t}")
    a(f"v_mul_f32 v{t}, {LOG2E}, v{x0}")
    a(f"v_mul_f32 v{t+1}, {LOG2E}, v{x1}")
    a(f"v_min_f32 v{t}, 0x41f00000, v{t}")
    a(f"v_min_f32 v{t+1}, 0x41f00000, v{t+1}")
    a(f"v_exp_f32 v{t}, v{t}")
    a(f"v_exp_f32 v{t+1}, v{t+1}")
    a(f"v_add_f32 v{t+2}, 2.0, v{t}")
    a(f"v_add_f32 v{t+3}, 2.0, v{t+1}")
    a(f"v_mul_f32 v{t}, v{t}, v{t+2}")
    a(f"v_mul_f32 v{t+1}, v{t+1}, v{t+3}")
    a(f"v_add_f32 v{t+2}, 2.0, v{t}")
    a(f"v_add_f32 v{t+3}, 2.0, v{t+1}")
    a(f"v_rcp_f32 v{t+2}, v{t+2}")
    a(f"v_rcp_f32 v{t+3}, v{t+3}")
    a(f"v_mul_f32 v{x0}, v{x0}, v{t}")
    a(f"v_mul_f32 v{x1}, v{x1}, v{t+1}")
    a(f"v_mul_f32 v{x0}, v{x0}, v{t+2}")
    a(f"v_mul_f32 v{x1}, v{x1}, v{t+3}")
    a(f"v_cvt_pk_bf16_f32 v{out}, v{x0}, v{x1}")

def gen_gemm1(a):
    a(".globl gemm1_kernel")
    a(".p2align 8")
    a(".type gemm1_kernel,@function")
    a("gemm1_kernel:")
    a("s_cmp_ge_u32 s2, 256")
    a("s_cbranch_scc1 L_g1_done")
    a.stamp_reset(); a.stamp()
    a("s_load_dwordx2 s[4:5], s[0:1], 120")
    a("s_load_dwordx4 s[8:11], s[0:1], 80")
    a("s_and_b32 s12, s2, 3")
    a("s_lshl_b32 s12, s12, 2")
    a("s_bfe_u32 s13, s2, 0x20003")
    a("s_add_u32 s12, s12, s13")
    a("s_bfe_u32 s13, s2, 0x10002")
    a("s_lshl_b32 s13, s13, 3")
    a("s_lshr_b32 s14, s2, 5")
    a("s_add_u32 s13, s13, s14")
    a("v_and_b32 v1, 63, v0")
    a("v_lshrrev_b32 v2, 6, v0")
    a("v_readfirstlane_b32 s15, v2")
    a("v_lshrrev_b32 v3, 4, v1")
    a("v_and_b32 v4, 15, v1")
    a("s_lshl_b32 s16, s12, 3")
    a("s_add_u32 s16, s16, s15")
    a("s_lshl_b32 s17, s16, 14")
    a("v_lshlrev_b32 v5, 4, v1")
    a("v_add_u32 v5, s17, v5")
    a("s_min_u32 s18, s15, 6")
    a("s_lshl_b32 s19, s18, 6")
    a("v_add_u32 v6, s19, v1")
    a("v_mul_u32_u24 v7, 4682, v6")
    a("v_lshrrev_b32 v7, 16, v7")
    a("v_mul_u32_u24 v8, 14, v7")
    a("v_sub_u32 v8, v6, v8")
    a("v_mul_u32_u24 v7, 3584, v7")
    a("v_lshl_add_u32 v7, v8, 4, v7")
    a("s_mul_i32 s19, s13, 224")
    a("v_add_u32 v7, s19, v7")
    a("s_lshl_b32 s18, s18, 10")
    a("v_lshlrev_b32 v8, 3, v3")
    a("v_add_u32 v8, s19, v8")
    a("v_mul_u32_u24 v9, 28800, v3")
    a("v_bfe_u32 v10, v1, 2, 2")
    a("v_mul_u32_u24 v10, 224, v10")
    a("v_add_u32 v9, v9, v10")
    a("v_and_b32 v10, 3, v1")
    a("v_lshl_add_u32 v9, v10, 3, v9")
    a("s_waitcnt lgkmcnt(0)")
    a("s_mov_b32 s20, s8"); a("s_mov_b32 s21, s9"); a("s_mov_b32 s22, 1835008"); a("s_mov_b32 s23, 0x00020000")
    vm = Q(a, "vmcnt", 63); lg = Q(a, "lgkmcnt", 15)
    BI = 16
    XF = 32
    WF = 96
    AC = 152
    for t in range(7):
        a(f"global_load_dwordx2 v[{BI+2*t}:{BI+2*t+1}], v8, s[10:11] offset:{32*t}")
        vm.issue(("b", t))
    for p in range(4):
        for s in range(4*p, 4*p+4):
            if s % 4 == 0 and s > 0:
                a("v_add_u32 v5, 0x1000, v5")
            a(f"global_load_dwordx4 v[{XF+4*s}:{XF+4*s+3}], v5, s[4:5] offset:{1024*(s%4)}")
            vm.issue(("x", s))
        for g in range(4):
            a(f"s_add_u32 s24, s18, {g*28800 + p*7168}")
            a("s_mov_b32 m0, s24")
            a(f"s_mov_b32 s25, {(128*g + 32*p)*3584}")
            a("buffer_load_dwordx4 v7, s[20:23], s25 offen lds")
            vm.issue(("w", p))
    for r in range(28):
        a(f"v_mov_b32 v{AC+r}, 0")
    def reads(s, t):
        b = WF + 28*(s & 1) + 4*t
        a(f"ds_read_b64_tr_b16 v[{b}:{b+1}], v9 offset:{s*1792 + t*32}")
        lg.issue((s, t))
        a(f"ds_read_b64_tr_b16 v[{b+2}:{b+3}], v9 offset:{s*1792 + 896 + t*32}")
        lg.issue((s, t))
    a.stamp()
    vm.wait(("w", 0))
    a("s_barrier")
    a.stamp()
    for t in range(7): reads(0, t)
    for s in range(16):
        if s + 1 < 16 and (s + 1) % 4 == 0:
            vm.wait(("w", (s+1)//4))
            a("s_barrier")
            if asmlib.STAMPS: a.stamp(); lg.q = []
        for t in range(7):
            if s + 1 < 16: reads(s+1, t)
            lg.wait((s, t))
            b = WF + 28*(s & 1) + 4*t
            a(f"v_mfma_f32_16x16x32_bf16 v[{AC+4*t}:{AC+4*t+3}], v[{b}:{b+3}], v[{XF+4*s}:{XF+4*s+3}], v[{AC+4*t}:{AC+4*t+3}]")
    a.stamp()
    a("s_mul_i32 s24, s16, 57344")
    a("s_mul_i32 s25, s13, 3584")
    a("s_add_u32 s24, s24, s25")
    a(f"s_add_u32 s24, s24, {HBUF}")
    a("v_lshrrev_b32 v10, 1, v3")
    a("v_lshlrev_b32 v10, 8, v10")
    a("v_lshl_add_u32 v10, v4, 4, v10")
    a("v_and_b32 v11, 1, v3")
    a("v_lshl_add_u32 v10, v11, 3, v10")
    a("v_add_u32 v10, s24, v10")
    for t in range(7):
        a(f"v_lshlrev_b32 v96, 16, v{BI+2*t}")
        a(f"v_and_b32 v97, 0xffff0000, v{BI+2*t}")
        a(f"v_lshlrev_b32 v98, 16, v{BI+2*t+1}")
        a(f"v_and_b32 v99, 0xffff0000, v{BI+2*t+1}")
        o = 108 + 2*(t & 1)
        mish_pair(a, AC+4*t, AC+4*t+1, 96, 97, o, 100)
        mish_pair(a, AC+4*t+2, AC+4*t+3, 98, 99, o+1, 104)
        a(f"global_store_dwordx2 v10, v[{o}:{o+1}], s[4:5] offset:{512*t}")
    a.stamp(); a.stamp_dump(1)
    a("L_g1_done:")
    a("s_endpgm")

if __name__ == "__main__":
    from k1 import gen_k1
    a = Asm()
    gen_k1(a)
    gen_gemm1(a)
    txt = "; @launch kernel=prep_kernel grid=(576,1,1) block=(256,1,1) lds=33280\n"
    txt += "; @launch kernel=gemm1_kernel grid=(256,1,1) block=(512,1,1) lds=115200\n"
    txt += '.amdgcn_target "amdgcn-amd-amdhsa--gfx950"\n.text\n'
    txt += a.finish()
    txt += '.section .rodata,"a"\n' + kd("prep_kernel", 140) + kd("gemm1_kernel", 180)
    open("../t2.s", "w").write(txt)
```

```python
import asmlib
from asmlib import Asm
from k1 import XNA, XNT, KREV, KROW, HBUF, AOT, LOG2E, bf16r, kd
from k2 import Q

GS = 7296
PBS = 4*GS
PB = [0, PBS, 2*PBS + 8192, 3*PBS + 8192]
CS = 4160
KCD = 8*CS
SCR = PB[2]
UZ = SCR + 65536
G1C_LDS = UZ + 2*8192

def mish_stream(acc0, out_addr_reg, T0):
    L = []
    A = L.append
    for t in range(7):
        x = [acc0 + 4*t + r for r in range(4)]
        tt = [T0 + 4*(t & 1) + r for r in range(4)]
        o = T0 + 8 + 2*(t & 1)
        for r in range(4): A(f"v_mul_f32 v{tt[r]}, {LOG2E}, v{x[r]}")
        for r in range(4): A(f"v_exp_f32 v{tt[r]}, v{tt[r]}")
        for r in range(4): A(f"v_add_f32 v{tt[r]}, 1.0, v{tt[r]}")
        for r in range(4): A(f"v_fma_f32 v{tt[r]}, v{tt[r]}, v{tt[r]}, 1.0")
        for r in range(4): A(f"v_rcp_f32 v{tt[r]}, v{tt[r]}")
        for r in range(4): A(f"v_mul_f32 v{tt[r]}, v{x[r]}, v{tt[r]}")
        for r in range(4): A(f"v_fma_f32 v{x[r]}, v{tt[r]}, -2.0, v{x[r]}")
        A(f"v_cvt_pk_bf16_f32 v{o}, v{x[0]}, v{x[1]}")
        A(f"v_cvt_pk_bf16_f32 v{o+1}, v{x[2]}, v{x[3]}")
        A(f"global_store_dwordx2 v{out_addr_reg}, v[{o}:{o+1}], s[4:5] offset:{512*t}")
    return L

def gen_g1conv(a):
    a(".globl g1conv_kernel")
    a(".p2align 8")
    a(".type g1conv_kernel,@function")
    a("g1conv_kernel:")
    a("s_cmp_ge_u32 s2, 256")
    a("s_cbranch_scc1 L_g1_done")
    a.stamp_reset(); a.stamp()
    a("s_load_dwordx2 s[4:5], s[0:1], 120")
    a("s_load_dwordx4 s[8:11], s[0:1], 80")
    a("s_load_dwordx2 s[6:7], s[0:1], 64")
    a("s_and_b32 s12, s2, 3")
    a("s_lshl_b32 s12, s12, 2")
    a("s_bfe_u32 s13, s2, 0x20003")
    a("s_add_u32 s12, s12, s13")
    a("s_bfe_u32 s13, s2, 0x10002")
    a("s_lshl_b32 s13, s13, 3")
    a("s_lshr_b32 s14, s2, 5")
    a("s_add_u32 s13, s13, s14")
    a("v_and_b32 v1, 63, v0")
    a("v_lshrrev_b32 v2, 6, v0")
    a("v_readfirstlane_b32 s15, v2")
    a("v_lshrrev_b32 v3, 4, v1")
    a("v_and_b32 v4, 15, v1")
    a("s_lshl_b32 s16, s12, 3")
    a("s_add_u32 s16, s16, s15")
    a("s_lshl_b32 s17, s16, 14")
    a("v_lshlrev_b32 v5, 4, v1")
    a("v_add_u32 v5, s17, v5")
    a("s_min_u32 s18, s15, 6")
    a("s_lshl_b32 s19, s18, 6")
    a("v_add_u32 v6, s19, v1")
    a("v_mul_u32_u24 v7, 4682, v6")
    a("v_lshrrev_b32 v7, 16, v7")
    a("v_mul_u32_u24 v8, 14, v7")
    a("v_sub_u32 v8, v6, v8")
    a("v_mul_u32_u24 v7, 3584, v7")
    a("v_lshl_add_u32 v7, v8, 4, v7")
    a("s_mul_i32 s19, s13, 224")
    a("v_add_u32 v7, s19, v7")
    a("s_lshl_b32 s18, s18, 10")
    a("v_lshlrev_b32 v8, 3, v3")
    a("v_add_u32 v8, s19, v8")
    a(f"v_mul_u32_u24 v9, {GS}, v3")
    a("v_bfe_u32 v10, v1, 2, 2")
    a("v_mul_u32_u24 v10, 224, v10")
    a("v_add_u32 v9, v9, v10")
    a("v_and_b32 v10, 3, v1")
    a("v_lshl_add_u32 v9, v10, 3, v9")
    a(f"v_add_u32 v11, {PB[2]}, v9")
    a("s_lshr_b32 s26, s15, 2")
    a("s_and_b32 s27, s15, 3")
    a("s_lshl_b32 s28, s2, 1")
    a("s_add_u32 s28, s28, s26")
    a("s_lshl_b32 s29, s26, 13")
    a(f"s_add_u32 s29, s29, {UZ}")
    a(f"s_mul_i32 s30, s26, {KCD}")
    a("s_lshl_b32 s31, s2, 2")
    a("s_waitcnt lgkmcnt(0)")
    a("s_load_dword s40, s[6:7], s31")
    a("s_mov_b32 s20, s8"); a("s_mov_b32 s21, s9"); a("s_mov_b32 s22, 1835008"); a("s_mov_b32 s23, 0x00020000")
    a("s_mov_b32 s32, s4"); a("s_mov_b32 s33, s5"); a("s_mov_b32 s34, 0x10000000"); a("s_mov_b32 s35, 0x00020000")
    vm = Q(a, "vmcnt", 63); lg = Q(a, "lgkmcnt", 15)
    BI = 16; XF = 32; WF = 96; AC = 152
    a("s_lshr_b32 s47, s2, 3")
    a("s_lshr_b32 s48, s2, 5")
    a("s_add_u32 s47, s47, s48")
    for i in range(4):
        a(f"s_add_u32 s56, s47, {i}")
        a("s_and_b32 s56, s56, 3")
        a(f"s_mul_i32 s{48+i}, s56, {32*3584}")
        a(f"s_lshl_b32 s{52+i}, s56, 12")
    def phase_loads(p):
        a(f"v_add_u32 v6, s{52+p}, v5")
        for s in range(4*p, 4*p+4):
            a(f"global_load_dwordx4 v[{XF+4*s}:{XF+4*s+3}], v6, s[4:5] offset:{1024*(s%4)}")
            vm.issue(("x", s))
        for g in range(4):
            a(f"s_add_u32 s24, s18, {PB[p] + g*GS}")
            a("s_mov_b32 m0, s24")
            a(f"s_add_u32 s25, s{48+p}, {128*g*3584}")
            a("buffer_load_dwordx4 v7, s[20:23], s25 offen lds")
            vm.issue(("w", p))
    for t in range(7):
        a(f"global_load_dwordx2 v[{BI+2*t}:{BI+2*t+1}], v8, s[10:11] offset:{32*t}")
        vm.issue(("b", t))
    phase_loads(0)
    phase_loads(1)
    a("s_lshl_b32 s36, s28, 12")
    a(f"s_add_u32 s36, s36, {XNT}")
    for k in range(2):
        if k == 0: a("s_mov_b32 s37, s27")
        else: a("s_mov_b32 s37, 4")
        a("s_lshl_b32 s38, s37, 6")
        a("v_add_u32 v12, s38, v1")
        a("v_mul_u32_u24 v13, 13108, v12")
        a("v_lshrrev_b32 v13, 16, v13")
        a("v_mul_u32_u24 v14, 5, v13")
        a("v_sub_u32 v14, v12, v14")
        a("v_min_u32 v14, 3, v14")
        a("v_lshlrev_b32 v13, 6, v13")
        a("v_lshl_add_u32 v13, v14, 4, v13")
        a("s_lshl_b32 s38, s37, 10")
        a("s_add_u32 s38, s38, s29")
        a("s_add_u32 s38, s38, 3072")
        a("s_mov_b32 m0, s38")
        a("buffer_load_dwordx4 v13, s[32:35], s36 offen lds")
        vm.issue("u")
    for r in range(12, 16): a(f"v_mov_b32 v{r}, 0")
    a("s_min_u32 s38, s27, 2")
    a("s_lshl_b32 s38, s38, 10")
    a("s_add_u32 s38, s38, s29")
    a("v_lshlrev_b32 v10, 4, v1")
    a("v_add_u32 v10, s38, v10")
    a("ds_write_b128 v10, v[12:15]")
    a("v_and_b32 v12, 31, v1")
    a("v_lshrrev_b32 v13, 5, v1")
    a("v_and_b32 v14, 7, v12")
    a("v_sub_u32 v14, 7, v14")
    a(f"v_mul_u32_u24 v14, {CS}, v14")
    a("v_lshrrev_b32 v15, 3, v12")
    a("v_sub_u32 v15, v13, v15")
    a("v_add_u32 v15, 3, v15")
    a("v_lshl_add_u32 v14, v15, 4, v14")
    a("s_lshl_b32 s38, s27, 10")
    a(f"s_sub_u32 s39, s30, s38")
    a("s_add_u32 s39, s39, 3072")
    a("v_add_u32 v180, s39, v14")
    a("s_lshl_b32 s38, s27, 9")
    a("s_sub_u32 s39, s30, s38")
    a("s_add_u32 s39, s39, 3584")
    a("v_add_u32 v181, s39, v14")
    a("v_mul_u32_u24 v14, 80, v12")
    a("v_lshl_add_u32 v15, v13, 4, v14")
    a("s_mul_i32 s38, s27, 1280")
    a("s_sub_u32 s39, s29, s38")
    a(f"s_add_u32 s39, s39, {3072 + 17*80}")
    a("v_add_u32 v182, s39, v15")
    a("s_mul_i32 s38, s27, 640")
    a("s_sub_u32 s39, s29, s38")
    a(f"s_add_u32 s39, s39, {3072 - 7*80}")
    a("v_add_u32 v183, s39, v15")
    a("v_lshl_add_u32 v15, v13, 3, v14")
    a("s_lshr_b32 s38, s27, 1")
    a("s_mul_i32 s39, s38, 2560")
    a("s_and_b32 s41, s27, 1")
    a("s_lshl_b32 s42, s41, 5")
    a("s_add_u32 s39, s39, s42")
    a("s_add_u32 s39, s39, s29")
    a("s_add_u32 s39, s39, 3072")
    a("v_add_u32 v184, s39, v15")
    a("v_lshlrev_b32 v15, 6, v12")
    a("v_lshl_add_u32 v15, v13, 3, v15")
    a("s_lshl_b32 s39, s28, 12")
    a("s_lshl_b32 s43, s38, 11")
    a("s_add_u32 s39, s39, s43")
    a("s_add_u32 s39, s39, s42")
    a(f"s_add_u32 s39, s39, {AOT}")
    a("v_add_u32 v185, s39, v15")
    a("v_lshlrev_b32 v15, 4, v1")
    a("s_lshl_b32 s39, s26, 15")
    a(f"s_add_u32 s39, s39, {SCR}")
    a("v_add_u32 v187, s39, v15")
    a("s_lshl_b32 s43, s27, 13")
    a("v_add_u32 v186, s43, v187")
    a("s_lshl_b32 s43, s27, 11")
    a("v_add_u32 v187, s43, v187")
    a("s_mul_i32 s24, s16, 57344")
    a("s_mul_i32 s25, s13, 3584")
    a("s_add_u32 s24, s24, s25")
    a(f"s_add_u32 s24, s24, {HBUF}")
    a("v_lshrrev_b32 v10, 1, v3")
    a("v_lshlrev_b32 v10, 8, v10")
    a("v_lshl_add_u32 v10, v4, 4, v10")
    a("v_and_b32 v12, 1, v3")
    a("v_lshl_add_u32 v10, v12, 3, v10")
    a("v_add_u32 v10, s24, v10")
    a("v_lshlrev_b32 v12, 4, v1")
    a("s_lshl_b32 s38, s27, 2")
    a("v_add_u32 v12, s38, v12")
    a(f"s_mul_i32 s44, s28, {KROW}")
    a(f"s_add_u32 s44, s44, {KREV}")
    a(f"s_mul_i32 s45, s27, {2*CS}")
    a("s_add_u32 s45, s45, s30")
    vm.wait(("b", 6))
    for t in range(7):
        a(f"v_lshlrev_b32 v{AC+4*t}, 16, v{BI+2*t}")
        a(f"v_and_b32 v{AC+4*t+1}, 0xffff0000, v{BI+2*t}")
        a(f"v_lshlrev_b32 v{AC+4*t+2}, 16, v{BI+2*t+1}")
        a(f"v_and_b32 v{AC+4*t+3}, 0xffff0000, v{BI+2*t+1}")
    a("s_waitcnt lgkmcnt(0)")
    a("s_lshl_b32 s38, s26, 4")
    a("s_lshr_b32 s40, s40, s38")
    a("s_lshl_b32 s40, s40, 16")
    def kcopy_loads():
        for c in range(2):
            a(f"s_add_u32 s46, s45, {c*CS}")
            a("s_mov_b32 m0, s46")
            for i in range(4):
                a(f"buffer_load_dwordx4 v12, s[32:35], s44 offen offset:{1024*i} lds")
                vm.issue("k")
            a("s_add_u32 s46, s46, 4096")
            a("s_mov_b32 m0, s46")
            a("v_add_u32 v13, 0x1000, v12")
            a("s_mov_b64 exec, 0xf")
            a("buffer_load_dwordx4 v13, s[32:35], s44 offen lds")
            vm.issue("k")
            a("s_mov_b64 exec, -1")
            if c == 0: a("v_add_u32 v12, 2, v12")
    def reads(s, t):
        b = WF + 28*(s & 1) + 4*t
        p = s // 4
        base = 9 if p < 2 else 11
        off = (p & 1)*PBS + (s & 3)*1792 + t*32
        a(f"ds_read_b64_tr_b16 v[{b}:{b+1}], v{base} offset:{off}")
        lg.issue((s, t))
        a(f"ds_read_b64_tr_b16 v[{b+2}:{b+3}], v{base} offset:{off + 896}")
        lg.issue((s, t))
    def begin_phase(p):
        vm.wait(("w", p))
        lg.waitall()
        a("s_barrier")
        a.stamp()
        if p + 2 < 4: phase_loads(p + 2)
        if p == 2: kcopy_loads()
    a.stamp()
    begin_phase(0)
    for t in range(7): reads(0, t)
    for s in range(16):
        if s + 1 < 16 and (s + 1) % 4 == 0:
            begin_phase((s+1)//4)
        vm.wait(("x", s))
        for t in range(7):
            if s + 1 < 16: reads(s+1, t)
            lg.wait((s, t))
            b = WF + 28*(s & 1) + 4*t
            a(f"v_mfma_f32_16x16x32_bf16 v[{AC+4*t}:{AC+4*t+3}], v[{b}:{b+3}], v[{XF+4*s}:{XF+4*s+3}], v[{AC+4*t}:{AC+4*t+3}]")
    vm.waitall()
    a("s_barrier")
    a.stamp()
    C1, C0, BUF = 32, 48, 64
    for r in range(32, 64): a(f"v_mov_b32 v{r}, 0")
    items = [(1, i) for i in range(32)] + [(0, i) for i in range(16)]
    D = 4
    def rd(n):
        t, i = items[n]
        b = BUF + 8*(n % D)
        if t == 1:
            a(f"ds_read_b128 v[{b}:{b+3}], v180 offset:{(31 - i)*32}")
            lg.issue(n)
            a(f"ds_read_b128 v[{b+4}:{b+7}], v182 offset:{(15 - i//2)*80 + 32*((i+1)&1)}")
            lg.issue(n)
        else:
            a(f"ds_read_b128 v[{b}:{b+3}], v181 offset:{(15 - i)*32}")
            lg.issue(n)
            a(f"ds_read_b128 v[{b+4}:{b+7}], v183 offset:{(7 - i//2)*80 + 32*((i+1)&1)}")
            lg.issue(n)
    ms = mish_stream(AC, 10, 96)
    per = (len(ms) + len(items) - 1) // len(items)
    for n in range(D - 1): rd(n)
    for n in range(len(items)):
        if n + D - 1 < len(items): rd(n + D - 1)
        lg.wait(n)
        t, i = items[n]
        b = BUF + 8*(n % D)
        c = C1 if t == 1 else C0
        a(f"v_mfma_f32_32x32x16_bf16 v[{c}:{c+15}], v[{b}:{b+3}], v[{b+4}:{b+7}], v[{c}:{c+15}]")
        for x in ms[n*per:(n+1)*per]: a(x)
    a.stamp()
    for q in range(8):
        src = (C0 if q < 4 else C1) + 4*(q & 3)
        a(f"ds_write_b128 v186, v[{src}:{src+3}] offset:{1024*q}")
    a("ds_read_b64 v[112:113], v184")
    a("ds_read_b64 v[114:115], v184 offset:16")
    a("s_waitcnt lgkmcnt(0)")
    a("s_barrier")
    for r in range(4):
        for k in range(2):
            a(f"ds_read_b128 v[{64+8*r+4*k}:{67+8*r+4*k}], v187 offset:{8192*r + 1024*k}")
    a("s_waitcnt lgkmcnt(0)")
    for k in range(8):
        a(f"v_add_f32 v{64+k}, v{64+k}, v{72+k}")
        a(f"v_add_f32 v{80+k}, v{80+k}, v{88+k}")
        a(f"v_add_f32 v{64+k}, v{64+k}, v{80+k}")
    for k in range(2):
        for h in range(2):
            u = 112 + 2*k + h
            x0, x1 = 64 + 4*k + 2*h, 65 + 4*k + 2*h
            a(f"v_lshlrev_b32 v96, 16, v{u}")
            a(f"v_and_b32 v97, 0xffff0000, v{u}")
            a(f"v_mul_f32 v96, s40, v96")
            a(f"v_mul_f32 v97, s40, v97")
            a(f"v_cvt_pk_bf16_f32 v98, v96, v97")
            a(f"v_lshlrev_b32 v96, 16, v98")
            a(f"v_and_b32 v97, 0xffff0000, v98")
            a(f"v_cvt_pk_bf16_f32 v98, v{x0}, v{x1}")
            a(f"v_lshlrev_b32 v{x0}, 16, v98")
            a(f"v_and_b32 v{x1}, 0xffff0000, v98")
            a(f"v_add_f32 v{x0}, v{x0}, v96")
            a(f"v_add_f32 v{x1}, v{x1}, v97")
            a(f"v_cvt_pk_bf16_f32 v{100+2*k+h}, v{x0}, v{x1}")
        a(f"global_store_dwordx2 v185, v[{100+2*k}:{101+2*k}], s[4:5] offset:{16*k}")
    a.stamp(); a.stamp_dump(1)
    a("L_g1_done:")
    a("s_endpgm")
```

```python
from asmlib import Asm
from k1 import XNA, XNT, KREV, KROW, HBUF, AOT, LOG2E, bf16r, kd
from k2 import Q

G2_AO = 131072
G2_SC = G2_AO + 8192
G2_LDS = G2_SC + 16384

def gen_gemm2(a):
    a(".globl gemm2_kernel")
    a(".p2align 8")
    a(".type gemm2_kernel,@function")
    a("gemm2_kernel:")
    a("s_cmp_ge_u32 s2, 256")
    a("s_cbranch_scc1 L_g2_done")
    a.stamp_reset(); a.stamp()
    a("s_load_dwordx2 s[4:5], s[0:1], 120")
    a("s_load_dwordx4 s[8:11], s[0:1], 96")
    a("s_load_dwordx2 s[6:7], s[0:1], 0")
    a("s_and_b32 s12, s2, 3")
    a("s_lshl_b32 s12, s12, 3")
    a("s_bfe_u32 s13, s2, 0x30003")
    a("s_add_u32 s12, s12, s13")
    a("s_bfe_u32 s13, s2, 0x10002")
    a("s_lshl_b32 s13, s13, 2")
    a("s_lshr_b32 s14, s2, 6")
    a("s_add_u32 s13, s13, s14")
    a("v_and_b32 v1, 63, v0")
    a("v_lshrrev_b32 v2, 6, v0")
    a("v_readfirstlane_b32 s15, v2")
    a("s_and_b32 s16, s15, 3")
    a("s_lshr_b32 s17, s15, 2")
    a("v_lshrrev_b32 v3, 4, v1")
    a("v_and_b32 v4, 15, v1")
    a("s_lshl_b32 s18, s12, 2")
    a("s_add_u32 s18, s18, s16")
    a("s_mul_i32 s19, s18, 56")
    a("s_mul_i32 s20, s17, 28")
    a("s_add_u32 s19, s19, s20")
    a("s_lshl_b32 s19, s19, 10")
    a(f"s_add_u32 s19, s19, {HBUF}")
    a("v_lshlrev_b32 v5, 4, v1")
    a("v_add_u32 v5, s19, v5")
    a("v_lshrrev_b32 v6, 3, v1")
    a("s_lshl_b32 s19, s16, 5")
    a("v_add_u32 v6, s19, v6")
    a("v_lshlrev_b32 v6, 10, v6")
    a("v_bfe_u32 v7, v1, 1, 2")
    a("v_bfe_u32 v8, v1, 4, 1")
    a("v_xor_b32 v7, v7, v8")
    a("v_and_b32 v8, 1, v1")
    a("v_lshl_add_u32 v9, v7, 1, v8")
    a("v_xor_b32 v10, 4, v9")
    a("s_mul_i32 s19, s17, 917504")
    a("s_lshl_b32 s20, s13, 7")
    a("s_add_u32 s19, s19, s20")
    a("v_add_u32 v6, s19, v6")
    a("v_lshl_add_u32 v7, v9, 4, v6")
    a("v_lshl_add_u32 v8, v10, 4, v6")
    a("s_lshl_b32 s21, s17, 14")
    a("s_lshl_b32 s22, s16, 12")
    a("s_add_u32 s22, s22, s21")
    a("v_bfe_u32 v9, v1, 2, 2")
    a("v_lshl_add_u32 v10, v3, 3, v9")
    a("v_lshlrev_b32 v10, 7, v10")
    a("v_and_b32 v11, 3, v1")
    a("v_lshl_add_u32 v10, v11, 3, v10")
    a("v_add_u32 v10, s21, v10")
    a("v_lshrrev_b32 v11, 1, v9")
    a("v_and_b32 v12, 1, v3")
    a("v_lshl_add_u32 v11, v12, 1, v11")
    for t in range(4):
        a(f"v_xor_b32 v12, {t}, v11")
        a(f"v_lshl_add_u32 v{20+t}, v12, 5, v10")
    a("s_lshl_b32 s23, s18, 4")
    a("v_add_u32 v12, s23, v4")
    a("v_lshlrev_b32 v12, 10, v12")
    a("v_lshl_add_u32 v12, v3, 3, v12")
    a("s_lshl_b32 s23, s17, 6")
    a("s_add_u32 s23, s23, s20")
    a("v_add_u32 v24, s23, v12")
    a("v_lshrrev_b32 v12, 3, v1")
    a("s_lshl_b32 s23, s13, 6")
    a("s_lshl_b32 s24, s15, 3")
    a("s_add_u32 s23, s23, s24")
    a("v_add_u32 v12, s23, v12")
    a("v_lshlrev_b32 v12, 12, v12")
    a("v_and_b32 v13, 7, v1")
    a("v_lshl_add_u32 v12, v13, 4, v12")
    a("s_lshl_b32 s23, s12, 7")
    a(f"s_add_u32 s23, s23, {AOT}")
    a("v_add_u32 v25, s23, v12")
    a("s_waitcnt lgkmcnt(0)")
    a("s_mov_b32 s28, s8"); a("s_mov_b32 s29, s9"); a("s_mov_b32 s30, 1835008"); a("s_mov_b32 s31, 0x00020000")
    a("s_mov_b32 s32, s4"); a("s_mov_b32 s33, s5"); a("s_mov_b32 s34, 0x10000000"); a("s_mov_b32 s35, 0x00020000")
    vm = Q(a, "vmcnt", 63); lg = Q(a, "lgkmcnt", 15)
    ACT = 32; WF = 144; AC = 176
    a("s_bfe_u32 s36, s2, 0x30003")
    a("s_lshr_b32 s37, s2, 6")
    a("s_lshl_b32 s37, s37, 1")
    a("s_add_u32 s36, s36, s37")
    for st in range(7):
        a(f"s_add_u32 s37, s36, {st}")
        for _ in range(2):
            a("s_cmp_ge_u32 s37, 7")
            a("s_cselect_b32 s38, 7, 0")
            a("s_sub_u32 s37, s37, s38")
        a(f"s_lshl_b32 s{40+st}, s37, 17")
        a(f"s_lshl_b32 s{48+st}, s37, 12")
    def dma_stage(st):
        for ii in range(4):
            a(f"s_add_u32 s24, s22, {(st & 3)*32768 + ii*1024}")
            a("s_mov_b32 m0, s24")
            a(f"s_add_u32 s25, s{40+st}, {ii*8192}")
            a(f"buffer_load_dwordx4 v{7 + (ii & 1)}, s[28:31], s25 offen lds")
            vm.issue(("w", st))
    def act_load(k):
        if k % 4 == 0:
            a(f"v_add_u32 v26, s{48 + k//4}, v5")
        a(f"global_load_dwordx4 v[{ACT+4*k}:{ACT+4*k+3}], v26, s[4:5] offset:{1024*(k%4)}")
        vm.issue(("a", k))
    for st in range(3):
        dma_stage(st)
        for k in range(4*st, 4*st+4): act_load(k)
    def misc_loads():
        a("global_load_dwordx2 v[16:17], v24, s[6:7]")
        vm.issue("x")
        a("global_load_dwordx2 v[18:19], v24, s[6:7] offset:32")
        vm.issue("x")
        a("s_lshl_b32 s24, s15, 10")
        a(f"s_add_u32 s24, s24, {G2_AO}")
        a("s_mov_b32 m0, s24")
        a("buffer_load_dwordx4 v25, s[32:35], 0 offen lds")
        vm.issue("ao")
    for r in range(16): a(f"v_mov_b32 v{AC+r}, 0")
    def reads(k, t):
        b = WF + 16*(k & 1) + 4*t
        ks = k % 4
        a(f"ds_read_b64_tr_b16 v[{b}:{b+1}], v{20+t} offset:{ks*4096}")
        lg.issue((k, t))
        a(f"ds_read_b64_tr_b16 v[{b+2}:{b+3}], v{20+t} offset:{ks*4096 + 512}")
        lg.issue((k, t))
    def begin_stage(st):
        vm.wait(("w", st))
        lg.waitall()
        a("s_barrier")
        a.stamp()
        if st + 3 < 7:
            dma_stage(st + 3)
            for k in range(4*(st+3), 4*(st+3)+4): act_load(k)
        if st == 4: misc_loads()
        if st > 0:
            for t in range(4):
                if st % 4 == 0: a(f"v_subrev_u32 v{20+t}, {3*32768}, v{20+t}")
                else: a(f"v_add_u32 v{20+t}, 0x8000, v{20+t}")
    a.stamp()
    begin_stage(0)
    for t in range(4): reads(0, t)
    for k in range(28):
        if k + 1 < 28 and (k + 1) % 4 == 0:
            begin_stage((k + 1)//4)
        vm.wait(("a", k))
        for t in range(4):
            if k + 1 < 28: reads(k + 1, t)
            lg.wait((k, t))
            b = WF + 16*(k & 1) + 4*t
            a(f"v_mfma_f32_16x16x32_bf16 v[{AC+4*t}:{AC+4*t+3}], v[{b}:{b+3}], v[{ACT+4*k}:{ACT+4*k+3}], v[{AC+4*t}:{AC+4*t+3}]")
    a.stamp()
    a("v_lshlrev_b32 v9, 4, v1")
    a("s_lshl_b32 s24, s15, 11")
    a(f"s_add_u32 s24, s24, {G2_SC}")
    a("v_add_u32 v10, s24, v9")
    a("s_xor_b32 s25, s15, 4")
    a("s_lshl_b32 s25, s25, 11")
    a(f"s_add_u32 s25, s25, {G2_SC}")
    a("v_add_u32 v11, s25, v9")
    a("s_cmp_eq_u32 s17, 1")
    a("s_cbranch_scc1 L_g2_kh1")
    a(f"ds_write_b128 v10, v[{AC+8}:{AC+11}]")
    a(f"ds_write_b128 v10, v[{AC+12}:{AC+15}] offset:1024")
    a("s_branch L_g2_x")
    a("L_g2_kh1:")
    a(f"ds_write_b128 v10, v[{AC}:{AC+3}]")
    a(f"ds_write_b128 v10, v[{AC+4}:{AC+7}] offset:1024")
    for r in range(8): a(f"v_mov_b32 v{AC+r}, v{AC+8+r}")
    a("L_g2_x:")
    a("s_waitcnt vmcnt(0) lgkmcnt(0)")
    a("s_barrier")
    a("ds_read_b128 v[32:35], v11")
    a("ds_read_b128 v[36:39], v11 offset:1024")
    a("v_lshlrev_b32 v12, 9, v3")
    a("v_lshl_add_u32 v12, v4, 1, v12")
    a("s_lshl_b32 s24, s17, 12")
    a("s_lshl_b32 s25, s16, 5")
    a("s_add_u32 s24, s24, s25")
    a(f"s_add_u32 s24, s24, {G2_AO}")
    a("v_add_u32 v12, s24, v12")
    for tt in range(2):
        for r in range(4):
            a(f"ds_read_u16 v{40+4*tt+r}, v12 offset:{(16*tt + r)*128}")
    a("s_waitcnt lgkmcnt(0)")
    for tt in range(2):
        for h in range(2):
            x0, x1 = AC + 4*tt + 2*h, AC + 4*tt + 2*h + 1
            a(f"v_add_f32 v{x0}, v{x0}, v{32+4*tt+2*h}")
            a(f"v_add_f32 v{x1}, v{x1}, v{33+4*tt+2*h}")
            a(f"v_cvt_pk_bf16_f32 v48, v{x0}, v{x1}")
            a(f"v_lshlrev_b32 v{x0}, 16, v48")
            a(f"v_and_b32 v{x1}, 0xffff0000, v48")
            xr = 16 + 2*tt + h
            a(f"v_lshlrev_b32 v49, 16, v{xr}")
            a(f"v_and_b32 v50, 0xffff0000, v{xr}")
            a(f"v_lshlrev_b32 v51, 16, v{40+4*tt+2*h}")
            a(f"v_lshlrev_b32 v52, 16, v{41+4*tt+2*h}")
            a("v_add_f32 v49, v49, v51")
            a("v_add_f32 v50, v50, v52")
            a("v_cvt_pk_bf16_f32 v48, v49, v50")
            a("v_lshlrev_b32 v49, 16, v48")
            a("v_and_b32 v50, 0xffff0000, v48")
            a(f"v_add_f32 v49, v49, v{x0}")
            a(f"v_add_f32 v50, v50, v{x1}")
            a(f"v_cvt_pk_bf16_f32 v{54+2*tt+h}, v49, v50")
        a(f"global_store_dwordx2 v24, v[{54+2*tt}:{55+2*tt}], s[10:11] offset:{32*tt}")
    a.stamp(); a.stamp_dump(3)
    a("L_g2_done:")
    a("s_endpgm")

HEADER = open("parallel_sum__ssm_conv_s4__dense_activation_mish__prompt.s.ref").read().split("; Override launch")[0]

if __name__ == "__main__":
    import sys, asmlib
    if len(sys.argv) > 1 and sys.argv[1] == "stamp": asmlib.STAMPS = True
    from k1 import gen_k1
    from k2b import gen_g1conv, G1C_LDS
    a = Asm()
    gen_k1(a)
    gen_g1conv(a)
    gen_gemm2(a)
    txt = HEADER
    txt += "; @launch kernel=prep_kernel grid=(576,1,1) block=(256,1,1) lds=33280\n"
    txt += f"; @launch kernel=g1conv_kernel grid=(256,1,1) block=(512,1,1) lds={G1C_LDS}\n"
    txt += f"; @launch kernel=gemm2_kernel grid=(256,1,1) block=(512,1,1) lds={G2_LDS}\n"
    txt += '.amdgcn_target "amdgcn-amd-amdhsa--gfx950"\n.text\n'
    txt += a.finish()
    txt += '.section .rodata,"a"\n' + kd("prep_kernel", 180) + kd("g1conv_kernel", 188) + kd("gemm2_kernel", 192)
    open("../t5s.s" if asmlib.STAMPS else "../t5.s", "w").write(txt)
```

```python
import re

TRANS = ("v_exp_f32", "v_log_f32", "v_rcp_f32", "v_rsq_f32", "v_sqrt_f32", "v_sin_f32", "v_cos_f32")

def regs_of(tok):
    tok = tok.strip()
    tok = tok.replace("abs(", "").replace(")", "").replace("|", "")
    if tok.startswith("-"):
        tok = tok[1:]
    m = re.fullmatch(r"([vsa])\[(\d+):(\d+)\]", tok)
    if m:
        return {(m.group(1), i) for i in range(int(m.group(2)), int(m.group(3)) + 1)}
    m = re.fullmatch(r"([vsa])(\d+)", tok)
    if m:
        return {(m.group(1), int(m.group(2)))}
    if tok in ("vcc", "vcc_lo", "vcc_hi"):
        return {("vcc", 0)}
    if tok in ("exec", "exec_lo", "exec_hi"):
        return {("exec", 0)}
    if tok == "m0":
        return {("m0", 0)}
    return set()

class Ins:
    def __init__(self, text):
        self.text = text
        t = text.split(";")[0].strip()
        self.label = t.endswith(":")
        self.directive = t.startswith(".")
        self.mn = ""
        self.dst = set(); self.src = set()
        self.kind = "other"
        if not t or self.label or self.directive:
            self.kind = "none"
            return
        parts = t.split(None, 1)
        self.mn = parts[0]
        ops = []
        if len(parts) > 1:
            ops = [o.strip() for o in re.split(r",(?![^\[]*\])", parts[1])]
        clean = []
        for o in ops:
            clean.append(o.split()[0] if o else o)
        self.mods = t
        mn = self.mn
        ops = clean
        if mn.startswith("v_mfma"):
            self.kind = "mfma"
            self.dst = regs_of(ops[0])
            self.srcA = regs_of(ops[1]); self.srcB = regs_of(ops[2]); self.srcC = regs_of(ops[3])
            self.src = self.srcA | self.srcB | self.srcC
            self.passes = 8 if "32x32x16" in mn else 4
            if "32x32x2_f32" in mn: self.passes = 16
            if "16x16x4_f32" in mn: self.passes = 8
        elif mn.startswith("v_cmp"):
            self.kind = "valu"
            self.dst = regs_of(ops[0])
            for o in ops[1:]: self.src |= regs_of(o)
        elif mn.startswith("v_permlane") and "swap" in mn:
            self.kind = "permlane"
            self.dst = regs_of(ops[0]) | regs_of(ops[1])
            self.src = set(self.dst)
        elif mn.startswith("v_readfirstlane") or mn.startswith("v_readlane"):
            self.kind = "readlane"
            self.dst = regs_of(ops[0])
            for o in ops[1:]: self.src |= regs_of(o)
        elif mn.startswith("v_"):
            self.kind = "trans" if mn.split("_e")[0] in TRANS or mn in TRANS else "valu"
            self.dst = regs_of(ops[0])
            rest = ops[1:]
            if mn.startswith(("v_add_co", "v_addc_co", "v_sub_co", "v_subb_co")):
                self.dst |= regs_of(ops[1]); rest = ops[2:]
            for o in rest: self.src |= regs_of(o)
            if mn.startswith(("v_fmac", "v_pk_fmac")):
                self.src |= self.dst
            if "dpp" in mn or "row_" in t or "quad_perm" in t:
                self.kind = "dpp"
        elif mn.startswith("ds_"):
            self.kind = "ds"
            if mn.startswith(("ds_read", "ds_bpermute", "ds_permute", "ds_swizzle")):
                self.dst = regs_of(ops[0])
                for o in ops[1:]: self.src |= regs_of(o)
            else:
                for o in ops: self.src |= regs_of(o)
        elif mn.startswith(("buffer_", "global_")):
            self.kind = "vmem"
            is_lds = " lds" in t
            if "load" in mn and not is_lds:
                self.dst = regs_of(ops[0])
                for o in ops[1:]: self.src |= regs_of(o)
            else:
                for o in ops: self.src |= regs_of(o)
            if is_lds: self.src |= {("m0", 0)}
            self.widestore = ("store" in mn) and ("x4" in mn or "x3" in mn)
            if self.widestore:
                if mn.startswith("buffer_"): self.data = regs_of(ops[0])
                else: self.data = regs_of(ops[1])
        elif mn.startswith("s_"):
            self.kind = "salu"
            if mn in ("s_nop", "s_waitcnt", "s_barrier", "s_endpgm", "s_branch", "s_setprio", "s_sleep") or mn.startswith(("s_cbranch", "s_cmp")):
                for o in ops: self.src |= regs_of(o)
            else:
                self.dst = regs_of(ops[0]) if ops else set()
                for o in ops[1:]: self.src |= regs_of(o)
                if "saveexec" in mn: self.dst |= {("exec", 0)}
        self.states = 1
        if mn == "s_nop":
            self.states = int(ops[0], 0) + 1

def is_valu(i): return i.kind in ("valu", "trans", "dpp", "permlane", "readlane")

def required(p, c):
    req = 0
    pv = {r for r in p.dst if r[0] in ("v", "a")}
    ps = {r for r in p.dst if r[0] in ("s", "vcc")}
    if p.kind == "trans" and (pv & c.src) and c.kind != "trans":
        req = max(req, 1)
    if is_valu(p):
        if c.kind == "mfma" and (pv & c.src): req = max(req, 2)
        if c.kind in ("permlane", "dpp") and (pv & c.src): req = max(req, 2)
        if c.kind == "readlane" and (pv & c.src): req = max(req, 1)
        if ps:
            if is_valu(c) and (ps & c.src): req = max(req, 2)
            if c.kind == "readlane" and (ps & c.src): req = max(req, 4)
            if c.kind == "vmem" and (ps & c.src): req = max(req, 5)
            if c.kind == "salu" and (ps & c.src): req = max(req, 1)
        if ("exec", 0) in p.dst: req = max(req, 5)
    if p.kind == "mfma":
        P = p.passes
        full = {4: 8, 8: 12, 16: 20}[P]
        part = {4: 6, 8: 10, 16: 18}[P]
        war = {4: 3, 8: 7, 16: 15}[P]
        if c.kind == "mfma":
            if (pv & (c.srcA | c.srcB)): req = max(req, full)
            if (pv & c.srcC):
                if c.srcC == pv and c.passes == P: req = max(req, 0)
                else: req = max(req, part)
            if (pv & c.dst) and not (c.srcC == pv and c.passes == P): req = max(req, part)
        else:
            if (pv & (c.src | c.dst)): req = max(req, full)
            if is_valu(c) and (p.srcC & c.dst): req = max(req, war)
    if p.kind == "salu" and ("m0", 0) in p.dst and ("m0", 0) in c.src:
        req = max(req, 1)
    if p.kind == "vmem" and getattr(p, "widestore", False):
        if (p.data & c.dst): req = max(req, 2)
    return req

STAMPS = False
STAMPINS = 's_memtime'
class Asm:
    def __init__(self):
        self.lines = []
        self.nst = 0
    def stamp_reset(self): self.nst = 0
    def stamp(self):
        if not STAMPS: return
        i = self.nst; self.nst += 1
        self(f"{STAMPINS} s[{80+2*i}:{81+2*i}]")
        self("s_waitcnt lgkmcnt(0)")
    def stamp_dump(self, region):
        if not STAMPS: return
        self("s_waitcnt vmcnt(0) lgkmcnt(0)")
        self.stamp()
        self("s_mov_b64 exec, -1")
        self("v_lshrrev_b32 v2, 6, v0")
        self("s_lshl_b32 s3, s2, 4")
        self("v_add_u32 v2, s3, v2")
        self("v_lshlrev_b32 v2, 6, v2")
        self(f"v_add_u32 v2, {(32<<20) + (region<<20)}, v2")
        for i in range(self.nst):
            self(f"v_mov_b32 v3, s{80+2*i}")
            self(f"global_store_dword v2, v3, s[4:5] offset:{4*i}")
    def __call__(self, s):
        for l in s.strip("\n").split("\n"):
            if l.strip():
                self.lines.append(l.strip())
    def finish(self, window=24):
        out = []
        for l in self.lines:
            c = Ins(l)
            if c.kind != "none":
                dist = 0
                need = 0
                for p in reversed(out):
                    if p.kind == "none":
                        continue
                    r = required(p, c)
                    if r > dist:
                        need = max(need, r - dist)
                    dist += p.states
                    if dist > window: break
                while need > 0:
                    n = min(need, 16)
                    out.append(Ins(f"s_nop {n-1}"))
                    need -= n
            out.append(c)
        txt = []
        for i in out:
            if i.label or i.directive: txt.append(i.text)
            else: txt.append("    " + i.text)
        return "\n".join(txt) + "\n"
```

```python
from asmlib import Asm

XNA = 0
XNT = 2 << 20
KREV = 4 << 20
KROW = 4224
HBUF = 8 << 20
AOT = 16 << 20
CNT = 24 << 20

PREFETCH = True
LOG2E = "0x3fb8aa3b"
INV2PI = "0x3e22f983"

def reduce_q(a, v, t):
    a(f"v_add_f32_dpp v{v}, v{v}, v{v} row_ror:8 row_mask:0xf bank_mask:0xf")
    a(f"v_mov_b32 v{t}, v{v}")
    a(f"v_permlane16_swap_b32 v{v}, v{t}")
    a(f"v_add_f32 v{v}, v{v}, v{t}")
    a(f"v_mov_b32 v{t}, v{v}")
    a(f"v_permlane32_swap_b32 v{v}, v{t}")
    a(f"v_add_f32 v{v}, v{v}, v{t}")

def bf16r(a, dst, src):
    a(f"v_cvt_pk_bf16_f32 v{dst}, v{src}, v{src}")
    a(f"v_lshlrev_b32 v{dst}, 16, v{dst}")

def ln_role(a):
    RS = 1040
    a.stamp_reset(); a.stamp()
    a("s_load_dwordx2 s[6:7], s[0:1], 0")
    a("v_and_b32 v1, 63, v0")
    a("v_lshrrev_b32 v2, 6, v0")
    a("v_and_b32 v3, 7, v1")
    a("v_lshrrev_b32 v4, 3, v1")
    a("v_lshl_add_u32 v5, v2, 3, v3")
    a("s_lshl_b32 s3, s2, 5")
    a("v_add_u32 v6, s3, v5")
    a("v_lshlrev_b32 v7, 10, v6")
    a("v_lshl_add_u32 v7, v4, 4, v7")
    a("s_waitcnt lgkmcnt(0)")
    for i in range(8):
        a(f"global_load_dwordx4 v[{16+4*i}:{19+4*i}], v7, s[6:7] offset:{128*i}")
    a("s_cmp_lg_u32 s2, 0")
    a("s_cbranch_scc1 L_nocnt")
    a("v_lshlrev_b32 v8, 8, v0")
    a(f"v_add_u32 v8, {CNT}, v8")
    a("v_mov_b32 v9, 0")
    a("v_cmp_gt_u32 vcc, 32, v0")
    a("s_and_saveexec_b64 s[8:9], vcc")
    a("s_cbranch_execz L_cntdone")
    a("global_store_dword v8, v9, s[4:5]")
    a("L_cntdone:")
    a("s_mov_b64 exec, s[8:9]")
    a("L_nocnt:")
    F = 64
    for k in range(32):
        if k % 4 == 0:
            a(f"s_waitcnt vmcnt({max(0, 7 - k//4 - 1)})")
        a(f"v_lshlrev_b32 v{F+2*k}, 16, v{16+k}")
        a(f"v_and_b32 v{F+2*k+1}, 0xffff0000, v{16+k}")
    a.stamp()
    for j in range(4):
        a(f"v_add_f32 v{8+j}, v{F+j}, v{F+4+j}")
    for k in range(8, 64, 4):
        for j in range(4):
            a(f"v_add_f32 v{8+j}, v{8+j}, v{F+k+j}")
    a("v_add_f32 v8, v8, v9"); a("v_add_f32 v10, v10, v11"); a("v_add_f32 v8, v8, v10")
    reduce_q(a, 8, 9)
    a("v_mul_f32 v8, 0x3b000000, v8")
    for j in range(4):
        a(f"v_mov_b32 v{10+j}, 0")
    for k in range(64):
        a(f"v_sub_f32 v14, v{F+k}, v8") if k % 2 == 0 else a(f"v_sub_f32 v15, v{F+k}, v8")
        t = 14 + (k % 2)
        a(f"v_fmac_f32 v{10+(k%4)}, v{t}, v{t}")
    a("v_add_f32 v10, v10, v11"); a("v_add_f32 v12, v12, v13"); a("v_add_f32 v10, v10, v12")
    reduce_q(a, 10, 9)
    a("v_mul_f32 v10, 0x3b000000, v10")
    bf16r(a, 8, 8)
    bf16r(a, 10, 10)
    a("v_add_f32 v10, 0x3727c5ac, v10")
    bf16r(a, 10, 10)
    a("v_sqrt_f32 v10, v10")
    bf16r(a, 10, 10)
    a("v_rcp_f32 v10, v10")
    for k in range(32):
        f0, f1 = F + 2*k, F + 2*k + 1
        a(f"v_sub_f32 v{f0}, v{f0}, v8")
        a(f"v_sub_f32 v{f1}, v{f1}, v8")
        a(f"v_cvt_pk_bf16_f32 v{16+k}, v{f0}, v{f1}")
        a(f"v_lshlrev_b32 v{f0}, 16, v{16+k}")
        a(f"v_and_b32 v{f1}, 0xffff0000, v{16+k}")
        a(f"v_mul_f32 v{f0}, v{f0}, v10")
        a(f"v_mul_f32 v{f1}, v{f1}, v10")
        a(f"v_cvt_pk_bf16_f32 v{16+k}, v{f0}, v{f1}")
    a.stamp()
    a("v_lshrrev_b32 v11, 4, v6")
    a("v_lshlrev_b32 v11, 14, v11")
    a("v_and_b32 v12, 15, v6")
    a("v_lshl_add_u32 v11, v12, 4, v11")
    a("v_lshl_add_u32 v11, v4, 10, v11")
    a("v_add_u32 v12, 0x2000, v11")
    for i in range(8):
        base = 11 + (i & 1)
        a(f"global_store_dwordx4 v{base}, v[{16+4*i}:{19+4*i}], s[4:5] offset:{(i>>1)*256}")
    a(f"v_mul_u32_u24 v13, {RS}, v5")
    a("v_lshl_add_u32 v13, v4, 4, v13")
    for i in range(8):
        a(f"ds_write_b128 v13, v[{16+4*i}:{19+4*i}] offset:{128*i}")
    a("s_waitcnt lgkmcnt(0)")
    a("s_barrier")
    a.stamp()
    a("v_lshrrev_b32 v8, 4, v1")
    a("v_bfe_u32 v9, v1, 2, 2")
    a("v_and_b32 v10, 3, v1")
    a("v_lshl_add_u32 v9, v8, 3, v9")
    a(f"v_mul_u32_u24 v9, {RS}, v9")
    a("v_lshl_add_u32 v9, v10, 3, v9")
    a("v_lshl_add_u32 v9, v2, 5, v9")
    a("v_and_b32 v10, 15, v1")
    a("v_lshl_add_u32 v10, v2, 4, v10")
    a("v_lshlrev_b32 v10, 12, v10")
    a("v_lshl_add_u32 v10, v8, 4, v10")
    a("s_lshl_b32 s3, s2, 6")
    a(f"s_add_u32 s3, s3, {XNT}")
    a("v_add_u32 v10, s3, v10")
    for it in range(8):
        a(f"ds_read_b64_tr_b16 v[{16+4*it}:{17+4*it}], v9 offset:{128*it}")
        a(f"ds_read_b64_tr_b16 v[{18+4*it}:{19+4*it}], v9 offset:{128*it + 4*RS}")
    for it in range(8):
        a(f"s_waitcnt lgkmcnt({14-2*it})")
        a(f"global_store_dwordx4 v10, v[{16+4*it}:{19+4*it}], s[4:5]")
        if it < 7:
            a("v_add_u32 v10, 0x40000, v10")
    a.stamp(); a.stamp_dump(0)
    a("s_branch L_prep_done")

def cexp(a, vval, lr2, lir, re, im, t0):
    a(f"v_mul_f32 v{t0}, v{lr2}, v{vval}")
    a(f"v_mul_f32 v{im}, v{lir}, v{vval}")
    a(f"v_exp_f32 v{t0}, v{t0}")
    a(f"v_fract_f32 v{im}, v{im}")
    a(f"v_cos_f32 v{re}, v{im}")
    a(f"v_sin_f32 v{im}, v{im}")
    a(f"v_mul_f32 v{re}, v{re}, v{t0}")
    a(f"v_mul_f32 v{im}, v{im}, v{t0}")

def split(a, re, im, h, l, t0, t1):
    a(f"v_cvt_pk_bf16_f32 v{h}, v{re}, v{im}")
    a(f"v_lshlrev_b32 v{t0}, 16, v{h}")
    a(f"v_and_b32 v{t1}, 0xffff0000, v{h}")
    a(f"v_sub_f32 v{t0}, v{re}, v{t0}")
    a(f"v_sub_f32 v{t1}, v{im}, v{t1}")
    a(f"v_cvt_pk_bf16_f32 v{l}, v{t0}, v{t1}")

def kgen_role(a):
    a("L_kgen:")
    a.stamp_reset(); a.stamp()
    a("s_load_dwordx4 s[8:11], s[0:1], 8")
    a("s_load_dwordx4 s[12:15], s[0:1], 24")
    a("s_load_dwordx4 s[16:19], s[0:1], 40")
    a("s_load_dwordx2 s[20:21], s[0:1], 56")
    a("s_sub_u32 s3, s2, 64")
    a("v_and_b32 v1, 63, v0")
    a("v_lshrrev_b32 v2, 6, v0")
    a("v_and_b32 v3, 15, v1")
    a("v_lshrrev_b32 v4, 4, v1")
    a("s_lshl_b32 s22, s3, 8")
    a("v_lshlrev_b32 v10, 6, v2")
    a("v_lshl_add_u32 v10, v4, 3, v10")
    a("v_add_u32 v10, s22, v10")
    a("s_lshr_b32 s23, s3, 1")
    a("s_lshl_b32 s23, s23, 2")
    a("s_waitcnt lgkmcnt(0)")
    a("s_load_dword s24, s[20:21], s23")
    ptr = ["s[8:9]", "s[10:11]", "s[12:13]", "s[14:15]", "s[16:17]", "s[18:19]"]
    for arr in range(6):
        for ks in range(2):
            r = 16 + (arr*2 + ks)*2
            a(f"global_load_dwordx2 v[{r}:{r+1}], v10, {ptr[arr]} offset:{32*ks}")
    if PREFETCH:
        a("s_load_dwordx2 s[28:29], s[0:1], 80")
        a("s_load_dwordx2 s[30:31], s[0:1], 96")
        a("s_lshr_b32 s32, s3, 3")
        a("s_bfe_u32 s33, s3, 0x10002")
        a("s_mul_i32 s34, s32, 28672")
        a("s_mul_i32 s35, s33, 1792")
        a("s_add_u32 s34, s34, s35")
        a("s_mul_i32 s36, s32, 28672")
        a("s_lshl_b32 s35, s33, 9")
        a("s_add_u32 s36, s36, s35")
        a("s_waitcnt lgkmcnt(0)")
        for k in range(4):
            a(f"v_add_u32 v56, {256*k}, v0")
            a("v_min_u32 v56, 895, v56")
            a("v_mul_u32_u24 v57, 9363, v56")
            a("v_lshrrev_b32 v57, 20, v57")
            a("v_mul_u32_u24 v58, 112, v57")
            a("v_sub_u32 v58, v56, v58")
            a("v_mul_u32_u24 v57, 3584, v57")
            a("v_lshl_add_u32 v57, v58, 4, v57")
            a("v_add_u32 v57, s34, v57")
            a("global_load_dwordx4 v[148:151], v57, s[28:29]")
            a("v_lshrrev_b32 v57, 5, v56")
            a("v_and_b32 v58, 31, v56")
            a("v_lshlrev_b32 v57, 10, v57")
            a("v_lshl_add_u32 v57, v58, 4, v57")
            a("v_add_u32 v57, s36, v57")
            a("global_load_dwordx4 v[148:151], v57, s[30:31]")
    a("v_lshlrev_b32 v5, 3, v3")
    a("v_cvt_f32_u32 v5, v5")
    a("v_lshrrev_b32 v6, 3, v3")
    a("v_and_b32 v11, 7, v3")
    a("v_lshl_add_u32 v6, v6, 7, v11")
    a("v_cvt_f32_u32 v6, v6")
    a("v_lshrrev_b32 v7, 2, v3")
    a("v_lshlrev_b32 v7, 7, v7")
    a("v_and_b32 v11, 3, v3")
    a("v_lshl_add_u32 v7, v11, 1, v7")
    a("v_add_u32 v7, 0x100, v7")
    a("v_subrev_u32 v11, 8, v3")
    a("v_lshrrev_b32 v11, 1, v11")
    a("v_lshlrev_b32 v11, 7, v11")
    a("v_and_b32 v12, 1, v3")
    a("v_lshl_add_u32 v11, v12, 2, v11")
    a("v_add_u32 v11, 0x200, v11")
    a("v_cmp_gt_u32 vcc, 8, v3")
    a("v_cndmask_b32 v7, v11, v7, vcc")
    a("v_cvt_f32_u32 v7, v7")
    a("v_lshlrev_b32 v8, 7, v3")
    a("v_add_u32 v8, 0x400, v8")
    a("v_cmp_gt_u32 vcc, 9, v3")
    a("v_cndmask_b32 v8, 0, v8, vcc")
    a("v_cvt_f32_u32 v8, v8")
    a("s_waitcnt lgkmcnt(0)")
    a("s_and_b32 s25, s3, 1")
    a("s_lshl_b32 s25, s25, 4")
    a("s_lshr_b32 s24, s24, s25")
    a("s_lshl_b32 s24, s24, 16")
    a("v_mov_b32 v9, s24")
    a(f"v_mul_f32 v9, {LOG2E}, v9")
    a("v_exp_f32 v9, v9")
    bf16r(a, 9, 9)
    for j in range(8):
        g = 140 + j
        a(f"v_lshlrev_b32 v40, 3, v0")
        a(f"v_sub_u32 v40, {2047 - j}, v40")
        a("v_cvt_f32_u32 v40, v40")
        bf16r(a, 40, 40)
        a("v_cvt_u32_f32 v40, v40")
        a("v_lshrrev_b32 v41, 7, v40")
        a("v_and_b32 v42, 7, v40")
        a("v_bfe_u32 v43, v40, 3, 4")
        a("v_lshl_add_u32 v44, v41, 3, v42")
        a("v_lshrrev_b32 v45, 1, v42")
        a("v_lshl_add_u32 v45, v41, 2, v45")
        a("v_add_u32 v45, 8, v45")
        a("v_lshrrev_b32 v46, 2, v42")
        a("v_lshl_add_u32 v46, v41, 1, v46")
        a("v_add_u32 v46, 16, v46")
        a("v_add_u32 v47, 24, v41")
        a("v_cmp_gt_u32 vcc, 8, v41")
        a("v_cndmask_b32 v47, v47, v46, vcc")
        a("v_cmp_gt_u32 vcc, 4, v41")
        a("v_cndmask_b32 v47, v47, v45, vcc")
        a("v_cmp_gt_u32 vcc, 2, v41")
        a("v_cndmask_b32 v47, v47, v44, vcc")
        a("v_lshrrev_b32 v44, 2, v47")
        a("v_lshl_add_u32 v44, v44, 4, v43")
        a("v_lshlrev_b32 v44, 4, v44")
        a("v_and_b32 v45, 3, v47")
        a(f"v_lshl_add_u32 v{g}, v45, 2, v44")
    a("s_waitcnt vmcnt(0)")
    a.stamp()
    XH = lambda t, ks: 64 + (t*2 + ks)*8
    XL = lambda t, ks: 64 + (t*2 + ks)*8 + 4
    YH = lambda ks: 112 + ks*8
    YL = lambda ks: 112 + ks*8 + 4
    for ks in range(2):
        for q in range(4):
            for arr in range(6):
                r = 16 + (arr*2 + ks)*2 + (q >> 1)
                if q & 1: a(f"v_and_b32 v{40+arr}, 0xffff0000, v{r}")
                else: a(f"v_lshlrev_b32 v{40+arr}, 16, v{r}")
            a("v_mul_f32 v46, v9, v40")
            a(f"v_mul_f32 v46, {LOG2E}, v46")
            a("v_mul_f32 v47, v9, v41")
            a(f"v_mul_f32 v47, {INV2PI}, v47")
            a("v_mul_f32 v42, v9, v42")
            a("v_mul_f32 v43, v9, v43")
            a("v_mul_f32 v48, v44, v42")
            a("v_fma_f32 v48, -v45, v43, v48")
            a("v_mul_f32 v49, v44, v43")
            a("v_fma_f32 v49, v45, v42, v49")
            cexp(a, 5, 46, 47, 50, 51, 52)
            a("v_mul_f32 v53, v48, v50")
            a("v_fma_f32 v53, -v49, v51, v53")
            a("v_mul_f32 v54, v48, v51")
            a("v_fma_f32 v54, v49, v50, v54")
            a("v_sub_f32 v54, 0, v54")
            split(a, 53, 54, YH(ks)+q, YL(ks)+q, 55, 56)
            for t in range(3):
                cexp(a, 6+t, 46, 47, 50, 51, 52)
                split(a, 50, 51, XH(t, ks)+q, XL(t, ks)+q, 55, 56)
    a.stamp()
    for r in range(128, 140):
        a(f"v_mov_b32 v{r}, 0")
    for t in range(3):
        c = f"v[{128+4*t}:{131+4*t}]"
        for ks in range(2):
            xh = f"v[{XH(t,ks)}:{XH(t,ks)+3}]"; xl = f"v[{XL(t,ks)}:{XL(t,ks)+3}]"
            yh = f"v[{YH(ks)}:{YH(ks)+3}]"; yl = f"v[{YL(ks)}:{YL(ks)+3}]"
            a(f"v_mfma_f32_16x16x32_bf16 {c}, {xl}, {yh}, {c}")
            a(f"v_mfma_f32_16x16x32_bf16 {c}, {xh}, {yl}, {c}")
            a(f"v_mfma_f32_16x16x32_bf16 {c}, {xh}, {yh}, {c}")
    a.stamp()
    a("v_mul_u32_u24 v40, 3072, v2")
    a("v_lshl_add_u32 v40, v1, 4, v40")
    for t in range(3):
        a(f"ds_write_b128 v40, v[{128+4*t}:{131+4*t}] offset:{1024*t}")
    a("s_waitcnt lgkmcnt(0)")
    a("s_barrier")
    for j in range(8):
        for w in range(4):
            a(f"ds_read_b32 v{64+4*j+w}, v{140+j} offset:{3072*w}")
    for j in range(8):
        a(f"s_waitcnt lgkmcnt({min(15, 28-4*j)})")
        a(f"v_add_f32 v{64+4*j}, v{64+4*j}, v{65+4*j}")
        a(f"v_add_f32 v{66+4*j}, v{66+4*j}, v{67+4*j}")
        a(f"v_add_f32 v{64+4*j}, v{64+4*j}, v{66+4*j}")
    for k in range(4):
        a(f"v_cvt_pk_bf16_f32 v{40+k}, v{64+8*k}, v{68+8*k}")
    a(f"s_mul_i32 s22, s3, {KROW}")
    a(f"s_add_u32 s22, s22, {KREV}")
    a("v_lshlrev_b32 v44, 4, v0")
    a("v_add_u32 v44, s22, v44")
    a("global_store_dwordx4 v44, v[40:43], s[4:5]")
    a.stamp(); a.stamp_dump(0)
    a("v_mov_b32 v48, 0"); a("v_mov_b32 v49, 0"); a("v_mov_b32 v50, 0"); a("v_mov_b32 v51, 0")
    a("v_add_u32 v44, 0x1000, v44")
    a("v_cmp_gt_u32 vcc, 8, v0")
    a("s_and_saveexec_b64 s[26:27], vcc")
    a("s_cbranch_execz L_prep_done")
    a("global_store_dwordx4 v44, v[48:51], s[4:5]")

def gen_k1(a):
    a(".globl prep_kernel")
    a(".p2align 8")
    a(".type prep_kernel,@function")
    a("prep_kernel:")
    a("s_cmp_ge_u32 s2, 576")
    a("s_cbranch_scc1 L_prep_done")
    a("s_load_dwordx2 s[4:5], s[0:1], 120")
    a("s_cmp_ge_u32 s2, 64")
    a("s_cbranch_scc1 L_kgen")
    ln_role(a)
    kgen_role(a)
    a("L_prep_done:")
    a("s_endpgm")

def kd(name, vgpr, sgpr=102):
    return f""".p2align 6
.amdhsa_kernel {name}
  .amdhsa_next_free_vgpr {vgpr}
  .amdhsa_next_free_sgpr {sgpr}
  .amdhsa_accum_offset {(vgpr+3)//4*4}
  .amdhsa_group_segment_fixed_size 0
  .amdhsa_kernarg_size 128
  .amdhsa_user_sgpr_count 2
  .amdhsa_user_sgpr_kernarg_segment_ptr 1
  .amdhsa_system_sgpr_workgroup_id_x 1
.end_amdhsa_kernel
"""

if __name__ == "__main__":
    a = Asm()
    gen_k1(a)
    txt = "; @launch kernel=prep_kernel grid=(576,1,1) block=(256,1,1) lds=33280\n"
    txt += '.amdgcn_target "amdgcn-amd-amdhsa--gfx950"\n.text\n'
    txt += a.finish()
    txt += '.section .rodata,"a"\n' + kd("prep_kernel", 140)
    open("../t1.s", "w").write(txt)
```

```python
import asmlib, os
from asmlib import Asm
from k2 import Q
OUT = os.environ.get('OUT', 't20')
APOS = int(os.environ.get('APOS', '12'))

NAME = "parallel_sum__ssm_conv_s4__dense_activation_mish__prompt_kernel"
XNA = 0
XNT = 2 << 20
HBUF = 8 << 20
AOT = 16 << 20
CNT = 24 << 20
LOG2E = "0x3fb8aa3b"
INV2PI = "0x3e22f983"
GS = 3712
HS = 4*GS
NSL = 5
CS = 4160
LNS = 4*HS
G2_AO = 65536
S_U = 33280
S_T = S_U + 16384
S_R0 = S_T + 6144
S_P = 0
LDS_BYTES = 74240

def bf16r(a, dst, src):
    a(f"v_cvt_pk_bf16_f32 v{dst}, v{src}, v{src}")
    a(f"v_lshlrev_b32 v{dst}, 16, v{dst}")

def wave_reduce(a, v, t):
    for r in (1, 2, 4, 8):
        a(f"v_add_f32_dpp v{v}, v{v}, v{v} row_ror:{r} row_mask:0xf bank_mask:0xf")
    a(f"v_mov_b32 v{t}, v{v}")
    a(f"v_permlane16_swap_b32 v{v}, v{t}")
    a(f"v_add_f32 v{v}, v{v}, v{t}")
    a(f"v_mov_b32 v{t}, v{v}")
    a(f"v_permlane32_swap_b32 v{v}, v{t}")
    a(f"v_add_f32 v{v}, v{v}, v{t}")

def helpers(a):
    def only_wave0(label):
        a("s_cmp_lg_u32 s22, 0")
        a(f"s_cbranch_scc1 {label}")
    def cnt_addr(idx_lines):
        for l in idx_lines: a(l)
        a("s_lshl_b32 s50, s50, 8")
        a("s_add_u32 s50, s18, s50")
        a("s_addc_u32 s51, s19, 0")
    def atomic_inc(idx_lines):
        cnt_addr(idx_lines)
        a("v_mov_b32 v5, 0")
        a("v_mov_b32 v6, 1")
        a("s_mov_b64 exec, 1")
        a("global_atomic_add v5, v6, s[50:51]")
        a("s_mov_b64 exec, -1")
    def poll_scalar(base, count, label):
        a("v_mov_b32 v5, 0")
        a("s_mov_b32 s55, 0")
        a(f"{label}_loop:")
        a(f"global_load_dword v7, v5, {base} sc1")
        a("s_waitcnt vmcnt(0)")
        a("v_readfirstlane_b32 s54, v7")
        a(f"s_cmp_ge_u32 s54, {count}")
        a(f"s_cbranch_scc1 {label}_ok")
        a("s_add_u32 s55, s55, 1")
        a("s_cmp_ge_u32 s55, 0x40000")
        a(f"s_cbranch_scc1 {label}_ok")
        a("s_sleep 2")
        a(f"s_branch {label}_loop")
        a(f"{label}_ok:")
    def poll_counter(idx_lines, count, label):
        cnt_addr(idx_lines)
        poll_scalar("s[50:51]", count, label)
    return only_wave0, atomic_inc, poll_scalar, poll_counter

def gen_M(a):
    only_wave0, atomic_inc, poll_scalar, poll_counter = helpers(a)
    vm = Q(a, "vmcnt", 63); lg = Q(a, "lgkmcnt", 15)
    if int(os.environ.get("PRIO", "2")): a(f"s_setprio {os.environ.get('PRIO', '2')}")
    a("s_lshl_b32 s50, s2, 3")
    a("s_add_u32 s50, s50, s22")
    a("s_lshl_b32 s50, s50, 10")
    a("v_lshlrev_b32 v2, 4, v1")
    a("v_add_u32 v6, s50, v2")
    a("s_waitcnt lgkmcnt(0)")
    a(f"s_add_u32 s18, s4, {CNT}")
    a("s_addc_u32 s19, s5, 0")
    a("global_load_dwordx4 v[16:19], v6, s[6:7]")
    vm.issue("xrow")
    a("s_mov_b32 s8, s56"); a("s_mov_b32 s9, s57"); a("s_mov_b32 s10, 1835008"); a("s_mov_b32 s11, 0x00020000")
    a("s_mov_b32 s12, s4"); a("s_mov_b32 s13, s5"); a("s_mov_b32 s14, 0x10000000"); a("s_mov_b32 s15, 0x00020000")
    a("s_and_b32 s26, s2, 3")
    a("s_lshl_b32 s26, s26, 2")
    a("s_bfe_u32 s27, s2, 0x20003")
    a("s_add_u32 s26, s26, s27")
    a("s_bfe_u32 s27, s2, 0x10002")
    a("s_lshl_b32 s27, s27, 3")
    a("s_lshr_b32 s50, s2, 5")
    a("s_add_u32 s27, s27, s50")
    a("s_lshl_b32 s28, s26, 3")
    a("s_add_u32 s28, s28, s22")
    a("s_lshr_b32 s50, s2, 3")
    a("s_lshr_b32 s51, s2, 5")
    a("s_add_u32 s50, s50, s51")
    a("s_lshl_b32 s50, s50, 1")
    for i in range(8):
        a(f"s_add_u32 s51, s50, {i}")
        a("s_and_b32 s51, s51, 7")
        a(f"s_mul_i32 s{34+i}, s51, {16*3584}")
        a(f"s_lshl_b32 s{68+i}, s51, 11")
    V_W1, V_XNA, V_TR1 = 124, 126, 127
    a("s_lshr_b32 s23, s22, 1")
    a("s_and_b32 s24, s22, 1")
    a("s_mul_i32 s50, s27, 224")
    a(f"s_mul_i32 s51, s23, {128*3584}")
    a("s_add_u32 s51, s51, s50")
    a("s_lshl_b32 s52, s24, 7")
    for i in range(2):
        a("v_add_u32 v7, s52, v1")
        if i: a("v_add_u32 v7, 64, v7")
        a("v_mul_u32_u24 v8, 4682, v7")
        a("v_lshrrev_b32 v8, 16, v8")
        a("v_mul_u32_u24 v9, 14, v8")
        a("v_sub_u32 v9, v7, v9")
        a("v_mul_u32_u24 v8, 3584, v8")
        a("v_lshl_add_u32 v8, v9, 4, v8")
        a(f"v_add_u32 v{V_W1+i}, s51, v8")
    a(f"s_mul_i32 s43, s23, {GS}")
    a("s_lshl_b32 s52, s24, 11")
    a("s_add_u32 s43, s43, s52")
    a("s_mov_b32 s44, -1")
    a("s_cmp_eq_u32 s24, 1")
    a("s_cselect_b32 s45, 0, -1")
    a("v_lshlrev_b32 v8, 3, v3")
    a("v_add_u32 v15, s50, v8")
    def w1_loads(p):
        for i in range(2):
            a(f"s_add_u32 s50, s43, {(p % NSL)*HS + i*1024}")
            a("s_mov_b32 m0, s50")
            if i == 1: a("s_mov_b64 exec, s[44:45]")
            a(f"buffer_load_dwordx4 v{V_W1+i}, s[8:11], s{34+p} offen lds")
            if i == 1: a("s_mov_b64 exec, -1")
            vm.issue(("w", p))
    for p in range(4): w1_loads(p)
    vm.wait("xrow")
    for k in range(4):
        a(f"v_lshlrev_b32 v{60+2*k}, 16, v{16+k}")
        a(f"v_and_b32 v{61+2*k}, 0xffff0000, v{16+k}")
    a("v_add_f32 v44, v60, v61"); a("v_add_f32 v45, v62, v63"); a("v_add_f32 v46, v64, v65"); a("v_add_f32 v47, v66, v67")
    a("v_add_f32 v44, v44, v45"); a("v_add_f32 v46, v46, v47"); a("v_add_f32 v44, v44, v46")
    wave_reduce(a, 44, 45)
    a("v_mul_f32 v44, 0x3b000000, v44")
    for k in range(8):
        a(f"v_sub_f32 v{68+k}, v{60+k}, v44")
    a("v_mul_f32 v46, v68, v68"); a("v_mul_f32 v47, v69, v69")
    for k in range(2, 8):
        a(f"v_fmac_f32 v{46+(k&1)}, v{68+k}, v{68+k}")
    a("v_add_f32 v46, v46, v47")
    wave_reduce(a, 46, 45)
    a("v_mul_f32 v46, 0x3b000000, v46")
    bf16r(a, 44, 44)
    bf16r(a, 46, 46)
    a("v_add_f32 v46, 0x3727c5ac, v46")
    bf16r(a, 46, 46)
    a("v_sqrt_f32 v46, v46")
    bf16r(a, 46, 46)
    a("v_rcp_f32 v46, v46")
    for k in range(4):
        f0, f1 = 60 + 2*k, 61 + 2*k
        a(f"v_sub_f32 v{f0}, v{f0}, v44")
        a(f"v_sub_f32 v{f1}, v{f1}, v44")
        a(f"v_cvt_pk_bf16_f32 v{16+k}, v{f0}, v{f1}")
        a(f"v_lshlrev_b32 v{f0}, 16, v{16+k}")
        a(f"v_and_b32 v{f1}, 0xffff0000, v{16+k}")
        a(f"v_mul_f32 v{f0}, v{f0}, v46")
        a(f"v_mul_f32 v{f1}, v{f1}, v46")
        a(f"v_cvt_pk_bf16_f32 v{16+k}, v{f0}, v{f1}")
    a("s_mul_i32 s50, s22, 1040")
    a(f"s_add_u32 s50, s50, {LNS}")
    a("v_add_u32 v44, s50, v2")
    a("ds_write_b128 v44, v[16:19]")
    a("v_and_b32 v45, 7, v1")
    a("v_lshrrev_b32 v46, 3, v1")
    a("s_lshl_b32 s50, s22, 3")
    a("v_add_u32 v46, s50, v46")
    a("v_mul_u32_u24 v47, 1040, v45")
    a("v_lshl_add_u32 v47, v46, 4, v47")
    a(f"v_add_u32 v47, {LNS}, v47")
    a("v_and_b32 v48, 15, v46")
    a("v_lshlrev_b32 v48, 10, v48")
    a("v_lshrrev_b32 v49, 4, v46")
    a("v_lshl_add_u32 v48, v49, 8, v48")
    a("v_lshl_add_u32 v48, v45, 4, v48")
    a("s_lshr_b32 s50, s2, 1")
    a("s_lshl_b32 s50, s50, 14")
    a("s_and_b32 s51, s2, 1")
    a("s_lshl_b32 s51, s51, 7")
    a("s_add_u32 s50, s50, s51")
    a("v_add_u32 v48, s50, v48")
    a("v_bfe_u32 v49, v1, 2, 2")
    a("v_mul_u32_u24 v49, 1040, v49")
    a("v_lshl_add_u32 v49, v3, 5, v49")
    a("v_and_b32 v50, 3, v1")
    a("v_lshl_add_u32 v49, v50, 3, v49")
    a("s_lshl_b32 s50, s22, 7")
    a(f"s_add_u32 s50, s50, {LNS}")
    a("v_add_u32 v49, s50, v49")
    a("s_lshl_b32 s50, s2, 13")
    a("s_lshl_b32 s51, s22, 10")
    a("s_add_u32 s50, s50, s51")
    a(f"s_add_u32 s50, s50, {XNT}")
    a("v_add_u32 v50, s50, v2")
    a("s_waitcnt lgkmcnt(0)")
    a("s_barrier")
    a("ds_read_b128 v[52:55], v47")
    a("ds_read_b64_tr_b16 v[56:57], v49")
    a(f"ds_read_b64_tr_b16 v[58:59], v49 offset:{4*1040}")
    a("s_waitcnt lgkmcnt(2)")
    a("global_store_dwordx4 v48, v[52:55], s[4:5] sc1")
    a("s_waitcnt lgkmcnt(0)")
    a("global_store_dwordx4 v50, v[56:59], s[4:5] sc1")
    a.stamp()
    a("s_lshl_b32 s50, s28, 14")
    a(f"v_add_u32 v{V_XNA}, s50, v2")
    a(f"v_mul_u32_u24 v8, {GS}, v3")
    a("v_bfe_u32 v9, v1, 2, 2")
    a("v_mul_u32_u24 v9, 224, v9")
    a("v_add_u32 v8, v8, v9")
    a("v_and_b32 v9, 3, v1")
    a(f"v_lshl_add_u32 v{V_TR1}, v9, 3, v8")
    a("s_waitcnt vmcnt(0)"); vm.q = []
    a("s_barrier")
    only_wave0("L_sig_ln")
    poll_scalar("s[20:21]", 1, "L_poll_flag")
    atomic_inc(["s_lshr_b32 s50, s2, 4"])
    a("L_sig_ln:")
    w1_loads(4)
    XF = 8; WF = 40; AC = 96
    BI = WF + 28
    for t in range(7):
        a(f"global_load_dwordx2 v[{BI+2*t}:{BI+2*t+1}], v15, s[58:59] offset:{32*t}")
        vm.issue("b")
    a("s_lshr_b32 s50, s2, 3")
    a("s_bfe_u32 s51, s2, 0x10002")
    a("s_mul_i32 s47, s50, 57344")
    a("s_mul_i32 s48, s51, 1792")
    a("s_add_u32 s47, s47, s48")
    a("s_mul_i32 s49, s50, 57344")
    a("s_lshl_b32 s48, s51, 9")
    a("s_add_u32 s49, s49, s48")
    for k in range(4):
        a(f"v_add_u32 v7, {512*k}, v0")
        a("v_min_u32 v7, 1791, v7")
        a("v_mul_u32_u24 v8, 9363, v7")
        a("v_lshrrev_b32 v8, 20, v8")
        a("v_mul_u32_u24 v9, 112, v8")
        a("v_sub_u32 v9, v7, v9")
        a("v_mul_u32_u24 v8, 3584, v8")
        a("v_lshl_add_u32 v8, v9, 4, v8")
        a("v_add_u32 v8, s47, v8")
        a("global_load_dwordx4 v[88:91], v8, s[56:57]")
        vm.issue("pf")
        a("v_lshrrev_b32 v8, 5, v7")
        a("v_and_b32 v9, 31, v7")
        a("v_lshlrev_b32 v8, 10, v8")
        a("v_lshl_add_u32 v8, v9, 4, v8")
        a("v_add_u32 v8, s49, v8")
        a("global_load_dwordx4 v[88:91], v8, s[60:61]")
        vm.issue("pf")
    a.stamp()
    only_wave0("L_poll_ln_skip")
    poll_counter(["s_mov_b32 s50, s26"], 16, "L_poll_ln")
    a("L_poll_ln_skip:")
    vm.waitall()
    a("s_barrier")
    a.stamp()
    def xn_loads(p):
        a(f"v_add_u32 v5, s{68+p}, v{V_XNA}")
        for s2 in range(2):
            r = XF + 8*(p & 3) + 4*s2
            a(f"global_load_dwordx4 v[{r}:{r+3}], v5, s[4:5] offset:{1024*s2} sc1")
            vm.issue(("x", 2*p + s2))
    for p in range(4): xn_loads(p)
    for t in range(7):
        c = AC + 4*t
        a(f"v_lshlrev_b32 v{c}, 16, v{BI+2*t}")
        a(f"v_and_b32 v{c+1}, 0xffff0000, v{BI+2*t}")
        a(f"v_lshlrev_b32 v{c+2}, 16, v{BI+2*t+1}")
        a(f"v_and_b32 v{c+3}, 0xffff0000, v{BI+2*t+1}")
    def reads(s, t):
        b = WF + 28*(s & 1) + 4*t
        p = s // 2
        off = (p % NSL)*HS + (s & 1)*1792 + t*32
        a(f"ds_read_b64_tr_b16 v[{b}:{b+1}], v{V_TR1} offset:{off}")
        lg.issue((s, t))
        a(f"ds_read_b64_tr_b16 v[{b+2}:{b+3}], v{V_TR1} offset:{off + 896}")
        lg.issue((s, t))
    def begin_phase(p):
        vm.wait(("w", p))
        lg.waitall()
        a("s_barrier")
        if p + NSL - 1 < 8: w1_loads(p + NSL - 1)
    for t in range(7): reads(0, t)
    for s in range(16):
        if s + 1 < 16 and (s + 1) % 2 == 0:
            begin_phase((s+1)//2)
        vm.wait(("x", s))
        for t in range(7):
            if s + 1 < 16: reads(s+1, t)
            lg.wait((s, t))
            b = WF + 28*(s & 1) + 4*t
            x = XF + 8*((s//2) & 3) + 4*(s & 1)
            c = AC + 4*t
            a(f"v_mfma_f32_16x16x32_bf16 v[{c}:{c+3}], v[{b}:{b+3}], v[{x}:{x+3}], v[{c}:{c+3}]")
        if s % 2 == 1 and s//2 + 4 < 8:
            xn_loads(s//2 + 4)
    a.stamp()
    a("s_mov_b32 s8, s60"); a("s_mov_b32 s9, s61")
    a("s_and_b32 s29, s2, 3")
    a("s_lshl_b32 s29, s29, 3")
    a("s_bfe_u32 s30, s2, 0x30003")
    a("s_add_u32 s29, s29, s30")
    a("s_bfe_u32 s30, s2, 0x10002")
    a("s_lshl_b32 s30, s30, 2")
    a("s_lshr_b32 s31, s2, 6")
    a("s_add_u32 s30, s30, s31")
    a("s_and_b32 s31, s22, 3")
    a("s_lshr_b32 s32, s22, 2")
    V_W2E, V_W2O = 124, 125
    a("v_lshrrev_b32 v8, 3, v1")
    a("s_lshl_b32 s51, s31, 4")
    a("v_add_u32 v8, s51, v8")
    a("v_lshlrev_b32 v8, 10, v8")
    a("v_bfe_u32 v9, v1, 1, 2")
    a("v_bfe_u32 v10, v1, 4, 1")
    a("v_xor_b32 v9, v9, v10")
    a("v_and_b32 v10, 1, v1")
    a("v_lshl_add_u32 v9, v9, 1, v10")
    a("v_xor_b32 v10, 4, v9")
    a("s_mul_i32 s51, s32, 917504")
    a("s_lshl_b32 s54, s30, 7")
    a("s_add_u32 s51, s51, s54")
    a("v_add_u32 v8, s51, v8")
    a(f"v_lshl_add_u32 v{V_W2E}, v9, 4, v8")
    a(f"v_lshl_add_u32 v{V_W2O}, v10, 4, v8")
    a("s_lshl_b32 s45, s32, 13")
    a("s_lshl_b32 s51, s31, 11")
    a("s_add_u32 s45, s45, s51")
    a("s_bfe_u32 s46, s2, 0x30003")
    a("s_lshl_b32 s46, s46, 1")
    a("s_lshr_b32 s51, s2, 6")
    a("s_mul_i32 s51, s51, 3")
    a("s_add_u32 s46, s46, s51")
    a("s_cmp_ge_u32 s46, 14")
    a("s_cselect_b32 s51, 14, 0")
    a("s_sub_u32 s46, s46, s51")
    a("s_mov_b32 s47, s46")
    def dma_stage(st):
        a("s_lshl_b32 s52, s46, 16")
        a("s_add_u32 s46, s46, 1")
        a("s_cmp_ge_u32 s46, 14")
        a("s_cselect_b32 s46, 0, s46")
        for ii in range(2):
            a(f"s_add_u32 s50, s45, {(st & 3)*16384 + ii*1024}")
            a("s_mov_b32 m0, s50")
            a(f"s_add_u32 s51, s52, {ii*8192}")
            a(f"buffer_load_dwordx4 v{V_W2E + ii}, s[8:11], s51 offen lds")
            vm.issue(("w2", st))
    a("s_mul_i32 s50, s28, 57344")
    a("s_mul_i32 s51, s27, 3584")
    a("s_add_u32 s50, s50, s51")
    a(f"s_add_u32 s50, s50, {HBUF}")
    a("v_lshrrev_b32 v10, 1, v3")
    a("v_lshlrev_b32 v10, 8, v10")
    a("v_lshl_add_u32 v10, v4, 4, v10")
    a("v_add_u32 v10, s50, v10")
    a("v_and_b32 v11, 1, v3")
    a("v_lshl_add_u32 v9, v11, 3, v10")
    a("v_lshl_add_u32 v8, v11, 9, v10")
    lg.waitall()
    a("s_barrier")
    for st in range(3): dma_stage(st)
    T0 = 40
    for t in range(7):
        x = [AC + 4*t + r for r in range(4)]
        tt = [T0 + 4*(t & 1) + r for r in range(4)]
        o = T0 + 8 + 4*((t >> 1) & 1) + 2*(t & 1)
        for r in range(4): a(f"v_mul_f32 v{tt[r]}, {LOG2E}, v{x[r]}")
        for r in range(4): a(f"v_exp_f32 v{tt[r]}, v{tt[r]}")
        for r in range(4): a(f"v_add_f32 v{tt[r]}, 1.0, v{tt[r]}")
        for r in range(4): a(f"v_fma_f32 v{tt[r]}, v{tt[r]}, v{tt[r]}, 1.0")
        for r in range(4): a(f"v_rcp_f32 v{tt[r]}, v{tt[r]}")
        for r in range(4): a(f"v_mul_f32 v{tt[r]}, v{x[r]}, v{tt[r]}")
        for r in range(4): a(f"v_fma_f32 v{x[r]}, v{tt[r]}, -2.0, v{x[r]}")
        a(f"v_cvt_pk_bf16_f32 v{o}, v{x[0]}, v{x[1]}")
        a(f"v_cvt_pk_bf16_f32 v{o+1}, v{x[2]}, v{x[3]}")
        if t & 1:
            q = o - 2
            a(f"v_permlane16_swap_b32 v{q}, v{q+2}")
            a(f"v_permlane16_swap_b32 v{q+1}, v{q+3}")
            a(f"global_store_dwordx4 v8, v[{q}:{q+3}], s[4:5] offset:{512*(t-1)} sc1")
        elif t == 6:
            a(f"global_store_dwordx2 v9, v[{o}:{o+1}], s[4:5] offset:{512*t} sc1")
    a.stamp()
    V_ACT, V_TR2, V_XO, V_AO = 100, 101, 105, 106
    a("s_lshl_b32 s50, s29, 2")
    a("s_add_u32 s50, s50, s31")
    a("s_mul_i32 s51, s50, 56")
    a("s_mul_i32 s52, s32, 28")
    a("s_add_u32 s51, s51, s52")
    a("s_lshl_b32 s51, s51, 10")
    a(f"s_add_u32 s51, s51, {HBUF}")
    a(f"v_add_u32 v{V_ACT}, s51, v2")
    a("v_bfe_u32 v13, v1, 2, 2")
    a("v_lshl_add_u32 v14, v3, 3, v13")
    a("v_lshlrev_b32 v14, 7, v14")
    a("v_and_b32 v15, 3, v1")
    a("v_lshl_add_u32 v14, v15, 3, v14")
    a("s_lshl_b32 s52, s32, 13")
    a("v_add_u32 v14, s52, v14")
    a("v_lshrrev_b32 v15, 1, v13")
    a("v_and_b32 v13, 1, v3")
    a("v_lshl_add_u32 v15, v13, 1, v15")
    for t in range(4):
        a(f"v_xor_b32 v13, {t}, v15")
        a(f"v_lshl_add_u32 v{V_TR2+t}, v13, 5, v14")
    a("s_lshl_b32 s51, s50, 4")
    a("v_add_u32 v13, s51, v4")
    a("v_lshlrev_b32 v13, 10, v13")
    a("v_lshl_add_u32 v13, v3, 3, v13")
    a("s_lshl_b32 s51, s32, 6")
    a("s_lshl_b32 s54, s30, 7")
    a("s_add_u32 s51, s51, s54")
    a(f"v_add_u32 v{V_XO}, s51, v13")
    a("v_lshrrev_b32 v13, 3, v1")
    a("s_lshl_b32 s51, s30, 6")
    a("s_lshl_b32 s55, s22, 3")
    a("s_add_u32 s51, s51, s55")
    a("v_add_u32 v13, s51, v13")
    a("v_lshlrev_b32 v13, 12, v13")
    a("v_and_b32 v14, 7, v1")
    a("v_lshl_add_u32 v13, v14, 4, v13")
    a("s_lshl_b32 s51, s29, 7")
    a(f"s_add_u32 s51, s51, {AOT}")
    a(f"v_add_u32 v{V_AO}, s51, v13")
    ACT = 8; WF2 = 40; AC2 = 72; XR = 88
    for r in range(16): a(f"v_mov_b32 v{AC2+r}, 0")
    a("s_waitcnt vmcnt(0)"); vm.q = []
    a("s_barrier")
    only_wave0("L_sig_h")
    atomic_inc(["s_add_u32 s50, s26, 16"])
    poll_counter(["s_lshr_b32 s50, s29, 1", "s_add_u32 s50, s50, 16"], 16, "L_poll_h")
    a("L_sig_h:")
    a("s_barrier")
    a.stamp()
    def act_stage(st):
        a("s_lshl_b32 s52, s47, 11")
        a("s_add_u32 s47, s47, 1")
        a("s_cmp_ge_u32 s47, 14")
        a("s_cselect_b32 s47, 0, s47")
        a(f"v_add_u32 v5, s52, v{V_ACT}")
        for j in range(2):
            rr = ACT + 8*(st & 3) + 4*j
            a(f"global_load_dwordx4 v[{rr}:{rr+3}], v5, s[4:5] offset:{1024*j} sc1")
            vm.issue(("a", 2*st + j))
    for st in range(3): act_stage(st)
    def reads2(k, t):
        b = WF2 + 16*(k & 1) + 4*t
        off = ((k//2) & 3)*16384 + (k % 2)*4096
        a(f"ds_read_b64_tr_b16 v[{b}:{b+1}], v{V_TR2+t} offset:{off}")
        lg.issue(("g2", k, t))
        a(f"ds_read_b64_tr_b16 v[{b+2}:{b+3}], v{V_TR2+t} offset:{off + 512}")
        lg.issue(("g2", k, t))
    def begin_stage(st):
        vm.wait(("w2", st))
        lg.waitall()
        a("s_barrier")
        if st + 3 < 14:
            dma_stage(st + 3)
        if st == APOS:
            only_wave0("L_poll_a_skip")
            poll_counter(["s_add_u32 s50, s30, 32"], 32, "L_poll_a")
            a("L_poll_a_skip:")
        if st == APOS + 1:
            for tt in range(2):
                a(f"global_load_dwordx2 v[{XR+2*tt}:{XR+1+2*tt}], v{V_XO}, s[6:7] offset:{32*tt}")
                vm.issue("x")
            a("s_lshl_b32 s50, s22, 10")
            a(f"s_add_u32 s50, s50, {G2_AO}")
            a("s_mov_b32 m0, s50")
            a(f"buffer_load_dwordx4 v{V_AO}, s[12:15], 0 offen sc1 lds")
            vm.issue("ao")
    begin_stage(0)
    for t in range(4): reads2(0, t)
    for k in range(28):
        if k + 1 < 28 and (k + 1) % 2 == 0:
            begin_stage((k + 1)//2)
        vm.wait(("a", k))
        for t in range(4):
            if k + 1 < 28: reads2(k + 1, t)
            lg.wait(("g2", k, t))
            b = WF2 + 16*(k & 1) + 4*t
            x = ACT + 8*((k//2) & 3) + 4*(k % 2)
            a(f"v_mfma_f32_16x16x32_bf16 v[{AC2+4*t}:{AC2+4*t+3}], v[{b}:{b+3}], v[{x}:{x+3}], v[{AC2+4*t}:{AC2+4*t+3}]")
        if k % 2 == 1 and k//2 + 3 < 14:
            act_stage(k//2 + 3)
    a.stamp()
    XS = 32768
    a("s_lshl_b32 s50, s22, 11")
    a(f"s_add_u32 s50, s50, {XS}")
    a("v_add_u32 v10, s50, v2")
    a("s_xor_b32 s51, s22, 4")
    a("s_lshl_b32 s51, s51, 11")
    a(f"s_add_u32 s51, s51, {XS}")
    a("v_add_u32 v11, s51, v2")
    a("s_cmp_eq_u32 s32, 1")
    a("s_cbranch_scc1 L_g2_kh1")
    a(f"ds_write_b128 v10, v[{AC2+8}:{AC2+11}]")
    a(f"ds_write_b128 v10, v[{AC2+12}:{AC2+15}] offset:1024")
    a("s_branch L_g2_x")
    a("L_g2_kh1:")
    a(f"ds_write_b128 v10, v[{AC2}:{AC2+3}]")
    a(f"ds_write_b128 v10, v[{AC2+4}:{AC2+7}] offset:1024")
    for r in range(8): a(f"v_mov_b32 v{AC2+r}, v{AC2+8+r}")
    a("L_g2_x:")
    a("s_waitcnt vmcnt(0) lgkmcnt(0)")
    a("s_barrier")
    a("ds_read_b128 v[32:35], v11")
    a("ds_read_b128 v[36:39], v11 offset:1024")
    a("v_lshlrev_b32 v12, 9, v3")
    a("v_lshl_add_u32 v12, v4, 1, v12")
    a("s_lshl_b32 s50, s32, 12")
    a("s_lshl_b32 s51, s31, 5")
    a("s_add_u32 s50, s50, s51")
    a(f"s_add_u32 s50, s50, {G2_AO}")
    a("v_add_u32 v12, s50, v12")
    for tt in range(2):
        for r in range(4):
            a(f"ds_read_u16 v{40+4*tt+r}, v12 offset:{(16*tt + r)*128}")
    a("s_waitcnt lgkmcnt(0)")
    for tt in range(2):
        for h in range(2):
            x0, x1 = AC2 + 4*tt + 2*h, AC2 + 4*tt + 2*h + 1
            a(f"v_add_f32 v{x0}, v{x0}, v{32+4*tt+2*h}")
            a(f"v_add_f32 v{x1}, v{x1}, v{33+4*tt+2*h}")
            a(f"v_cvt_pk_bf16_f32 v48, v{x0}, v{x1}")
            a(f"v_lshlrev_b32 v{x0}, 16, v48")
            a(f"v_and_b32 v{x1}, 0xffff0000, v48")
            xr = XR + 2*tt + h
            a(f"v_lshlrev_b32 v49, 16, v{xr}")
            a(f"v_and_b32 v50, 0xffff0000, v{xr}")
            a(f"v_lshlrev_b32 v51, 16, v{40+4*tt+2*h}")
            a(f"v_lshlrev_b32 v52, 16, v{41+4*tt+2*h}")
            a("v_add_f32 v49, v49, v51")
            a("v_add_f32 v50, v50, v52")
            a("v_cvt_pk_bf16_f32 v48, v49, v50")
            a("v_lshlrev_b32 v49, 16, v48")
            a("v_and_b32 v50, 0xffff0000, v48")
            a(f"v_add_f32 v49, v49, v{x0}")
            a(f"v_add_f32 v50, v50, v{x1}")
            a(f"v_cvt_pk_bf16_f32 v{54+2*tt+h}, v49, v50")
        a(f"global_store_dwordx2 v{V_XO}, v[{54+2*tt}:{55+2*tt}], s[62:63] offset:{32*tt}")
    a.stamp(); a.stamp_dump(1)
    a("s_branch L_done")

def gen_S(a):
    only_wave0, atomic_inc, poll_scalar, poll_counter = helpers(a)
    vm = Q(a, "vmcnt", 63); lg = Q(a, "lgkmcnt", 15)
    a("L_roleS:")
    a.nst = 1
    a("s_sub_u32 s3, s2, 256")
    a("s_lshr_b32 s23, s22, 2")
    a("s_and_b32 s24, s22, 3")
    a("s_lshl_b32 s25, s3, 1")
    a("s_add_u32 s25, s25, s23")
    a("s_lshl_b32 s50, s25, 8")
    a("s_lshl_b32 s51, s24, 6")
    a("s_add_u32 s50, s50, s51")
    a("v_lshlrev_b32 v6, 3, v3")
    a("v_add_u32 v6, s50, v6")
    a("v_lshlrev_b32 v2, 4, v1")
    a("s_lshl_b32 s52, s3, 2")
    a("s_waitcnt lgkmcnt(0)")
    a(f"s_add_u32 s18, s4, {CNT}")
    a("s_addc_u32 s19, s5, 0")
    a("s_or_b32 s50, s3, s22")
    a("s_cmp_lg_u32 s50, 0")
    a("s_cbranch_scc1 L_nozero")
    a("v_lshlrev_b32 v7, 8, v1")
    a("v_mov_b32 v8, 0")
    a("v_mov_b32 v9, 1")
    a("global_store_dword v7, v8, s[18:19] sc1")
    a("s_waitcnt vmcnt(0)")
    a("s_mov_b64 exec, 1")
    a("global_store_dword v8, v9, s[20:21] sc1")
    a("s_mov_b64 exec, -1")
    a("L_nozero:")
    ptr = ["s[64:65]", "s[66:67]", "s[68:69]", "s[70:71]", "s[72:73]", "s[74:75]"]
    PAR = 16
    for ks in range(2):
        for arr in range(6):
            r = PAR + (ks*6 + arr)*2
            a(f"global_load_dwordx2 v[{r}:{r+1}], v6, {ptr[arr]} offset:{32*ks}")
            vm.issue(("par", ks))
    a("s_load_dword s53, s[76:77], s52")
    a("s_load_dword s33, s[78:79], s52")
    a("s_mov_b32 s12, s4"); a("s_mov_b32 s13, s5"); a("s_mov_b32 s14, 0x10000000"); a("s_mov_b32 s15, 0x00020000")
    K0 = 8
    a("v_lshlrev_b32 v8, 3, v4")
    a("v_cvt_f32_u32 v8, v8")
    a("v_lshrrev_b32 v9, 3, v4")
    a("v_and_b32 v13, 7, v4")
    a("v_lshl_add_u32 v9, v9, 7, v13")
    a("v_cvt_f32_u32 v9, v9")
    a("v_lshrrev_b32 v10, 2, v4")
    a("v_lshlrev_b32 v10, 7, v10")
    a("v_and_b32 v13, 3, v4")
    a("v_lshl_add_u32 v10, v13, 1, v10")
    a("v_add_u32 v10, 0x100, v10")
    a("v_subrev_u32 v13, 8, v4")
    a("v_lshrrev_b32 v13, 1, v13")
    a("v_lshlrev_b32 v13, 7, v13")
    a("v_and_b32 v14, 1, v4")
    a("v_lshl_add_u32 v13, v14, 2, v13")
    a("v_add_u32 v13, 0x200, v13")
    a("v_cmp_gt_u32 vcc, 8, v4")
    a("v_cndmask_b32 v10, v13, v10, vcc")
    a("v_cvt_f32_u32 v10, v10")
    a("v_lshlrev_b32 v11, 7, v4")
    a("v_add_u32 v11, 0x400, v11")
    a("v_cmp_gt_u32 vcc, 9, v4")
    a("v_cndmask_b32 v11, 0, v11, vcc")
    a("v_cvt_f32_u32 v11, v11")
    V_GA = 120
    a("v_and_b32 v15, 0xff, v0")
    for j in range(8):
        a(f"v_lshlrev_b32 v100, 3, v15")
        a(f"v_sub_u32 v100, {2047 - j}, v100")
        a("v_cvt_f32_u32 v100, v100")
        bf16r(a, 100, 100)
        a("v_cvt_u32_f32 v100, v100")
        a("v_lshrrev_b32 v101, 7, v100")
        a("v_and_b32 v102, 7, v100")
        a("v_bfe_u32 v103, v100, 3, 4")
        a("v_lshl_add_u32 v104, v101, 3, v102")
        a("v_lshrrev_b32 v105, 1, v102")
        a("v_lshl_add_u32 v105, v101, 2, v105")
        a("v_add_u32 v105, 8, v105")
        a("v_lshrrev_b32 v106, 2, v102")
        a("v_lshl_add_u32 v106, v101, 1, v106")
        a("v_add_u32 v106, 16, v106")
        a("v_add_u32 v107, 24, v101")
        a("v_cmp_gt_u32 vcc, 8, v101")
        a("v_cndmask_b32 v107, v107, v106, vcc")
        a("v_cmp_gt_u32 vcc, 4, v101")
        a("v_cndmask_b32 v107, v107, v105, vcc")
        a("v_cmp_gt_u32 vcc, 2, v101")
        a("v_cndmask_b32 v107, v107, v104, vcc")
        a("v_lshrrev_b32 v104, 2, v107")
        a("v_lshl_add_u32 v104, v104, 4, v103")
        a("v_lshlrev_b32 v104, 4, v104")
        a("v_and_b32 v105, 3, v107")
        a("v_lshl_add_u32 v104, v105, 2, v104")
        a(f"v_add_u32 v{V_GA+j}, {S_T}, v104")
    a("s_waitcnt lgkmcnt(0)")
    a("s_lshl_b32 s50, s23, 4")
    a("s_lshr_b32 s53, s53, s50")
    a("s_lshl_b32 s53, s53, 16")
    a("s_lshl_b32 s34, s33, 16")
    a("s_and_b32 s35, s33, 0xffff0000")
    a("v_mov_b32 v12, s53")
    a(f"v_mul_f32 v12, {LOG2E}, v12")
    a("v_exp_f32 v12, v12")
    bf16r(a, 12, 12)
    ACK = 72
    for r in range(ACK, ACK + 12): a(f"v_mov_b32 v{r}, 0")
    a.stamp()
    FB = 40
    for ks in range(2):
        vm.wait(("par", ks))
        for q in range(4):
            U_ = 100
            for arr in range(6):
                r = PAR + (ks*6 + arr)*2 + (q >> 1)
                if q & 1: a(f"v_and_b32 v{U_+arr}, 0xffff0000, v{r}")
                else: a(f"v_lshlrev_b32 v{U_+arr}, 16, v{r}")
            a("v_mul_f32 v106, v12, v100")
            a("v_mul_f32 v107, v12, v101")
            a("v_mul_f32 v102, v12, v102")
            a("v_mul_f32 v103, v12, v103")
            a(f"v_mul_f32 v106, {LOG2E}, v106")
            a(f"v_mul_f32 v107, {INV2PI}, v107")
            a("v_mul_f32 v108, v104, v102")
            a("v_mul_f32 v109, v104, v103")
            T_, P_, C_, E_ = 84, 88, 92, 96
            for k in range(4): a(f"v_mul_f32 v{T_+k}, v106, v{K0+k}")
            for k in range(4): a(f"v_mul_f32 v{P_+k}, v107, v{K0+k}")
            a("v_fma_f32 v108, -v105, v103, v108")
            a("v_fma_f32 v109, v105, v102, v109")
            for k in range(4): a(f"v_exp_f32 v{T_+k}, v{T_+k}")
            for k in range(4): a(f"v_fract_f32 v{P_+k}, v{P_+k}")
            for k in range(4): a(f"v_cos_f32 v{C_+k}, v{P_+k}")
            for k in range(4): a(f"v_sin_f32 v{P_+k}, v{P_+k}")
            for k in range(4): a(f"v_mul_f32 v{C_+k}, v{C_+k}, v{T_+k}")
            for k in range(4): a(f"v_mul_f32 v{P_+k}, v{P_+k}, v{T_+k}")
            a(f"v_mul_f32 v110, v108, v{C_}")
            a(f"v_mul_f32 v111, v108, v{P_}")
            a(f"v_fma_f32 v110, -v109, v{P_}, v110")
            a(f"v_fma_f32 v{P_}, -v109, v{C_}, -v111")
            a(f"v_mov_b32 v{C_}, v110")
            H = [FB + 24 + q] + [FB + 8*t + q for t in range(3)]
            Lo = [FB + 28 + q] + [FB + 8*t + 4 + q for t in range(3)]
            for k in range(4): a(f"v_cvt_pk_bf16_f32 v{H[k]}, v{C_+k}, v{P_+k}")
            for k in range(4): a(f"v_lshlrev_b32 v{T_+k}, 16, v{H[k]}")
            for k in range(4): a(f"v_and_b32 v{E_+k}, 0xffff0000, v{H[k]}")
            for k in range(4): a(f"v_sub_f32 v{T_+k}, v{C_+k}, v{T_+k}")
            for k in range(4): a(f"v_sub_f32 v{E_+k}, v{P_+k}, v{E_+k}")
            for k in range(4): a(f"v_cvt_pk_bf16_f32 v{Lo[k]}, v{T_+k}, v{E_+k}")
        for t in range(3):
            c = f"v[{ACK+4*t}:{ACK+3+4*t}]"
            xh = f"v[{FB+8*t}:{FB+8*t+3}]"; xl = f"v[{FB+8*t+4}:{FB+8*t+7}]"
            yh = f"v[{FB+24}:{FB+27}]"; yl = f"v[{FB+28}:{FB+31}]"
            a(f"v_mfma_f32_16x16x32_bf16 {c}, {xl}, {yh}, {c}")
            a(f"v_mfma_f32_16x16x32_bf16 {c}, {xh}, {yl}, {c}")
            a(f"v_mfma_f32_16x16x32_bf16 {c}, {xh}, {yh}, {c}")
    a("s_mul_i32 s50, s22, 3072")
    a(f"v_add_u32 v16, s50, v2")
    for t in range(3):
        a(f"ds_write_b128 v16, v[{ACK+4*t}:{ACK+3+4*t}] offset:{S_P + 1024*t}")
    a("s_mul_i32 s50, s23, 12288")
    a("s_lshl_b32 s51, s24, 2")
    a("s_add_u32 s50, s50, s51")
    a("v_add_u32 v17, s50, v2")
    a("s_mul_i32 s50, s23, 3072")
    a("s_add_u32 s50, s50, s51")
    a(f"s_add_u32 s50, s50, {S_T}")
    a("v_add_u32 v18, s50, v2")
    for r in range(20, 24): a(f"v_mov_b32 v{r}, 0")
    a("s_min_u32 s50, s24, 2")
    a("s_lshl_b32 s50, s50, 10")
    a("s_lshl_b32 s51, s23, 13")
    a("s_add_u32 s50, s50, s51")
    a(f"s_add_u32 s50, s50, {S_U}")
    a("v_add_u32 v19, s50, v2")
    a("ds_write_b128 v19, v[20:23]")
    a("s_waitcnt lgkmcnt(0)")
    a("s_barrier")
    for t in range(3):
        for w in range(4):
            a(f"ds_read_b32 v{40+4*t+w}, v17 offset:{S_P + 3072*w + 1024*t}")
    for t in range(3):
        a(f"s_waitcnt lgkmcnt({8-4*t})")
        a(f"v_add_f32 v{40+4*t}, v{40+4*t}, v{41+4*t}")
        a(f"v_add_f32 v{42+4*t}, v{42+4*t}, v{43+4*t}")
        a(f"v_add_f32 v{40+4*t}, v{40+4*t}, v{42+4*t}")
        a(f"ds_write_b32 v18, v{40+4*t} offset:{1024*t}")
    a.stamp()
    V_F, V_U, V_UR, V_AST, V_SW, V_SR, V_KC, V_R0 = 108, 109, 110, 111, 112, 113, 114, 115
    a("v_and_b32 v8, 31, v1")
    a("v_lshrrev_b32 v9, 5, v1")
    a("v_and_b32 v10, 7, v8")
    a("v_sub_u32 v10, 7, v10")
    a(f"v_mul_u32_u24 v10, {CS}, v10")
    a("v_lshrrev_b32 v11, 3, v8")
    a("v_sub_u32 v11, v9, v11")
    a("v_add_u32 v11, 3, v11")
    a("v_lshl_add_u32 v10, v11, 4, v10")
    a("s_lshl_b32 s50, s24, 10")
    a("s_sub_u32 s50, 3072, s50")
    a("s_lshl_b32 s51, s24, 9")
    a("s_sub_u32 s51, 3584, s51")
    a("s_cmp_eq_u32 s23, 0")
    a("s_cselect_b32 s50, s50, s51")
    a(f"v_add_u32 v{V_F}, s50, v10")
    a("v_mul_u32_u24 v10, 80, v8")
    a("v_lshl_add_u32 v11, v9, 4, v10")
    a("s_mul_i32 s50, s24, 1280")
    a(f"s_sub_u32 s50, {S_U + 3072 + 17*80}, s50")
    a("s_mul_i32 s51, s24, 640")
    a(f"s_sub_u32 s51, {S_U + 3072 - 7*80}, s51")
    a("s_cmp_eq_u32 s23, 0")
    a("s_cselect_b32 s50, s50, s51")
    a(f"v_add_u32 v{V_U}, s50, v11")
    a("s_xor_b32 s52, s23, 1")
    a("v_lshl_add_u32 v11, v9, 3, v10")
    a("s_mul_i32 s50, s52, 2560")
    a("s_lshl_b32 s51, s24, 4")
    a("s_add_u32 s50, s50, s51")
    a(f"s_add_u32 s50, s50, {S_U + 3072}")
    a(f"v_add_u32 v{V_UR}, s50, v11")
    a("v_lshlrev_b32 v11, 6, v8")
    a("v_lshl_add_u32 v11, v9, 3, v11")
    a("s_lshl_b32 s50, s3, 13")
    a("s_lshl_b32 s55, s52, 11")
    a("s_add_u32 s50, s50, s55")
    a("s_add_u32 s50, s50, s51")
    a(f"s_add_u32 s50, s50, {AOT}")
    a(f"v_add_u32 v{V_AST}, s50, v11")
    a("s_lshl_b32 s50, s22, 12")
    a(f"v_add_u32 v{V_SW}, s50, v2")
    a("s_lshl_b32 s50, s23, 14")
    a("s_lshl_b32 s51, s24, 10")
    a("s_add_u32 s50, s50, s51")
    a(f"v_add_u32 v{V_SR}, s50, v2")
    a("v_lshlrev_b32 v10, 4, v15")
    a(f"v_add_u32 v{V_R0}, {S_R0}, v10")
    a(f"s_mul_i32 s50, s23, {4*CS}")
    a(f"v_add_u32 v{V_KC}, s50, v10")
    only_wave0("L_s_poll_skip")
    poll_scalar("s[20:21]", 1, "L_s_poll_flag")
    a("v_lshlrev_b32 v6, 8, v4")
    a("s_mov_b32 s55, 0")
    a("L_s_poll_loop:")
    a("global_load_dword v7, v6, s[18:19] sc1")
    a("s_waitcnt vmcnt(0)")
    a("v_cmp_gt_u32 vcc, 16, v7")
    a("s_cmp_eq_u64 vcc, 0")
    a("s_cbranch_scc1 L_s_poll_skip")
    a("s_add_u32 s55, s55, 1")
    a("s_cmp_ge_u32 s55, 0x40000")
    a("s_cbranch_scc1 L_s_poll_skip")
    a("s_sleep 2")
    a("s_branch L_s_poll_loop")
    a("L_s_poll_skip:")
    a("s_waitcnt lgkmcnt(0)")
    a("s_barrier")
    a("s_lshl_b32 s52, s25, 4")
    a(f"s_add_u32 s52, s52, {XNT}")
    a("s_lshl_b32 s53, s23, 13")
    for k in range(2):
        if k == 0: a("s_mov_b32 s54, s24")
        else: a("s_mov_b32 s54, 4")
        a("s_lshl_b32 s50, s54, 6")
        a("v_add_u32 v8, s50, v1")
        a("v_mul_u32_u24 v9, 13108, v8")
        a("v_lshrrev_b32 v9, 16, v9")
        a("v_mul_u32_u24 v10, 5, v9")
        a("v_sub_u32 v10, v8, v10")
        a("v_min_u32 v10, 3, v10")
        a("v_lshl_add_u32 v9, v9, 2, v10")
        a("v_lshlrev_b32 v9, 13, v9")
        a("s_lshl_b32 s50, s54, 10")
        a("s_add_u32 s50, s50, s53")
        a(f"s_add_u32 s50, s50, {S_U + 3072}")
        a("s_mov_b32 m0, s50")
        a("buffer_load_dwordx4 v9, s[12:15], s52 offen sc1 lds")
        vm.issue("u")
    for dd in range(2):
        for j in range(8):
            a(f"ds_read_b32 v{40+j}, v{V_GA+j} offset:{3072*dd}")
        a("s_waitcnt lgkmcnt(0)")
        for k in range(4):
            a(f"v_cvt_pk_bf16_f32 v{64+k}, v{40+2*k}, v{41+2*k}")
        a(f"ds_write_b128 v{V_R0}, v[64:67]")
        a("v_cmp_gt_u32 vcc, 4, v15")
        a("s_and_saveexec_b64 s[50:51], vcc")
        a(f"s_cbranch_execz L_nt{dd}")
        a(f"ds_write_b128 v{V_R0}, v[20:23] offset:4096")
        a(f"L_nt{dd}:")
        a("s_mov_b64 exec, s[50:51]")
        a("s_waitcnt lgkmcnt(0)")
        a("s_barrier")
        a(f"ds_read_b128 v[68:71], v{V_R0} offset:16")
        a("s_waitcnt lgkmcnt(0)")
        a("s_cmp_eq_u32 s23, 0")
        a(f"s_cbranch_scc1 L_h0_{dd}")
        for i in range(6): a(f"v_mov_b32 v{64+i}, v{66+i}")
        a(f"L_h0_{dd}:")
        for i in range(4): a(f"v_alignbit_b32 v{40+i}, v{65+i}, v{64+i}, 16")
        for i in range(4): a(f"v_alignbit_b32 v{44+i}, v{66+i}, v{65+i}, 16")
        for i in range(4): a(f"v_mov_b32 v{48+i}, v{65+i}")
        a(f"ds_write_b128 v{V_KC}, v[64:67]")
        a(f"ds_write_b128 v{V_KC}, v[40:43] offset:{1*CS}")
        a(f"ds_write_b128 v{V_KC}, v[48:51] offset:{2*CS}")
        a(f"ds_write_b128 v{V_KC}, v[44:47] offset:{3*CS}")
        a("v_cmp_gt_u32 vcc, 4, v15")
        a("s_and_saveexec_b64 s[50:51], vcc")
        a(f"s_cbranch_execz L_nt2{dd}")
        for c in range(4):
            a(f"ds_write_b128 v{V_KC}, v[20:23] offset:{c*CS + 4096}")
        a(f"L_nt2{dd}:")
        a("s_mov_b64 exec, s[50:51]")
        a("s_waitcnt lgkmcnt(0)")
        if dd == 0:
            vm.wait("u")
        a("s_barrier")
        CA, BUF = 24, 40
        for r in range(CA, CA + 16): a(f"v_mov_b32 v{r}, 0")
        UO = 8192*dd
        D = 4
        def loop(nit):
            half = nit // 2
            def rd(n):
                b = BUF + 8*(n % D)
                a(f"ds_read_b128 v[{b}:{b+3}], v{V_F} offset:{(nit - 1 - n)*32}")
                lg.issue((dd, nit, n))
                a(f"ds_read_b128 v[{b+4}:{b+7}], v{V_U} offset:{UO + (half - 1 - n//2)*80 + 32*((n+1)&1)}")
                lg.issue((dd, nit, n))
            for n in range(D - 1): rd(n)
            for n in range(nit):
                if n + D - 1 < nit: rd(n + D - 1)
                lg.wait((dd, nit, n))
                b = BUF + 8*(n % D)
                a(f"v_mfma_f32_32x32x16_bf16 v[{CA}:{CA+15}], v[{b}:{b+3}], v[{b+4}:{b+7}], v[{CA}:{CA+15}]")
        a("s_cmp_eq_u32 s23, 1")
        a(f"s_cbranch_scc1 L_cvB{dd}")
        loop(32)
        a(f"s_branch L_cvE{dd}")
        a(f"L_cvB{dd}:")
        loop(16)
        a(f"L_cvE{dd}:")
        a("s_nop 15")
        a(f"ds_read_b64 v[72:73], v{V_UR} offset:{UO}")
        a("s_waitcnt lgkmcnt(0)")
        a("s_barrier")
        for q in range(4):
            a(f"ds_write_b128 v{V_SW}, v[{CA+4*q}:{CA+3+4*q}] offset:{1024*q}")
        a("s_waitcnt lgkmcnt(0)")
        a("s_barrier")
        for r in range(4):
            a(f"ds_read_b128 v[{40+4*r}:{43+4*r}], v{V_SR} offset:{4096*r}")
        a("s_waitcnt lgkmcnt(0)")
        for k in range(4):
            a(f"v_add_f32 v{40+k}, v{40+k}, v{44+k}")
            a(f"v_add_f32 v{48+k}, v{48+k}, v{52+k}")
            a(f"v_add_f32 v{40+k}, v{40+k}, v{48+k}")
        for h in range(2):
            u = 72 + h
            x0, x1 = 40 + 2*h, 41 + 2*h
            a(f"v_lshlrev_b32 v76, 16, v{u}")
            a(f"v_and_b32 v77, 0xffff0000, v{u}")
            a(f"v_mul_f32 v76, s{34+dd}, v76")
            a(f"v_mul_f32 v77, s{34+dd}, v77")
            a(f"v_cvt_pk_bf16_f32 v78, v76, v77")
            a(f"v_lshlrev_b32 v76, 16, v78")
            a(f"v_and_b32 v77, 0xffff0000, v78")
            a(f"v_cvt_pk_bf16_f32 v78, v{x0}, v{x1}")
            a(f"v_lshlrev_b32 v{x0}, 16, v78")
            a(f"v_and_b32 v{x1}, 0xffff0000, v78")
            a(f"v_add_f32 v{x0}, v{x0}, v76")
            a(f"v_add_f32 v{x1}, v{x1}, v77")
            a(f"v_cvt_pk_bf16_f32 v{80+h}, v{x0}, v{x1}")
        if dd == 1: a(f"v_add_u32 v{V_AST}, 0x1000, v{V_AST}")
        a(f"global_store_dwordx2 v{V_AST}, v[80:81], s[4:5] sc1")
        a.stamp()
    a("s_waitcnt vmcnt(0)")
    a("s_barrier")
    only_wave0("L_sig_a")
    atomic_inc(["s_lshr_b32 s50, s3, 5", "s_add_u32 s50, s50, 32"])
    a("L_sig_a:")
    a.stamp(); a.stamp_dump(2)

def gen(a):
    a(f".globl {NAME}")
    a(".p2align 8")
    a(f".type {NAME},@function")
    a(f"{NAME}:")
    a("s_cmp_ge_u32 s2, 512")
    a("s_cbranch_scc1 L_done")
    a("s_lshr_b32 s3, s2, 8")
    a("s_lshr_b32 s4, s2, 3")
    a("s_xor_b32 s3, s3, s4")
    a("s_and_b32 s3, s3, 1")
    a("s_lshl_b32 s3, s3, 8")
    a("s_and_b32 s2, s2, 0xff")
    a("s_or_b32 s2, s2, s3")
    a.stamp_reset(); a.stamp()
    a("s_load_dwordx2 s[6:7], s[0:1], 0")
    a("s_load_dwordx2 s[4:5], s[0:1], 120")
    a("s_load_dwordx4 s[64:67], s[0:1], 8")
    a("s_load_dwordx4 s[68:71], s[0:1], 24")
    a("s_load_dwordx4 s[72:75], s[0:1], 40")
    a("s_load_dwordx4 s[76:79], s[0:1], 56")
    a("s_load_dwordx4 s[56:59], s[0:1], 80")
    a("s_load_dwordx4 s[60:63], s[0:1], 96")
    a("s_load_dwordx2 s[20:21], s[0:1], 112")
    a("v_and_b32 v1, 63, v0")
    a("v_lshrrev_b32 v2, 6, v0")
    a("v_readfirstlane_b32 s22, v2")
    a("v_lshrrev_b32 v3, 4, v1")
    a("v_and_b32 v4, 15, v1")
    a("s_cmp_ge_u32 s2, 256")
    a("s_cbranch_scc1 L_roleS")
    gen_M(a)
    gen_S(a)
    a("L_done:")
    a("s_endpgm")

HEADER = open("parallel_sum__ssm_conv_s4__dense_activation_mish__prompt.s.ref").read().split("; Override launch")[0]

if __name__ == "__main__":
    import sys
    if len(sys.argv) > 1 and sys.argv[1].startswith("stamp"): asmlib.STAMPS = True
    if len(sys.argv) > 1 and sys.argv[1] == "stampreal": asmlib.STAMPINS = "s_memrealtime"
    a = Asm()
    gen(a)
    txt = HEADER
    txt += f"; @launch grid=(512,1,1) block=(512,1,1) lds={LDS_BYTES}\n"
    txt += '.amdgcn_target "amdgcn-amd-amdhsa--gfx950"\n.text\n'
    txt += a.finish()
    txt += f""".section .rodata,"a"
.p2align 6
.amdhsa_kernel {NAME}
  .amdhsa_next_free_vgpr 128
  .amdhsa_next_free_sgpr 102
  .amdhsa_accum_offset 128
  .amdhsa_group_segment_fixed_size 0
  .amdhsa_kernarg_size 128
  .amdhsa_user_sgpr_count 2
  .amdhsa_user_sgpr_kernarg_segment_ptr 1
  .amdhsa_system_sgpr_workgroup_id_x 1
.end_amdhsa_kernel
"""
    open(f"../{OUT}s.s" if asmlib.STAMPS else f"../{OUT}.s", "w").write(txt)
```
